```python
import torch

def _softmax(x, axis=-1):
    return torch.softmax(x, dim=axis)

def _gelu(x):
    return torch.nn.functional.gelu(x, approximate='tanh')

def _silu(x):
    return torch.nn.functional.silu(x)

def _sigmoid(x):
    return torch.sigmoid(x)

def _layernorm(x, axis=-1, eps=1e-05):
    m = x.mean(dim=axis, keepdim=True)
    v = x.var(dim=axis, keepdim=True, unbiased=False)
    return (x - m) / torch.sqrt(v + eps)

def _scatter_add(tgt, idx, src, axis=0):
    return tgt.clone().index_add_(axis, idx, src)

def _segment_sum(src, seg, n):
    out = torch.zeros((n,) + src.shape[1:], dtype=src.dtype)
    return out.index_add_(0, seg, src)

def _pad(x, pw):
    flat = tuple((v for pair in reversed(pw) for v in pair))
    return torch.nn.functional.pad(x, flat)
kernel_name = 'adaLN_cond__memory_aug_recurrent_mem_tr__glu_gated_geglu__prompt'

def setup_inputs():

    _w = lambda a: (lambda t: t.to(torch.bfloat16) if t.is_floating_point() else t)(torch.as_tensor(a))

    def _A_setup():
        B, S, Dm = (1, 2048, 512)
        H, Dh = (32, 128)
        M, seg = (8, 32)
        seg = min(seg, S)
        S = S // seg * seg
        return {'x': _w((lambda *s: torch.randn(*s, dtype=torch.bfloat16) * 0.05)(B, S, Dm)), 'mem0': _w((lambda *s: torch.randn(*s, dtype=torch.bfloat16) * 0.8)(B, M, Dm)), 'Wq': _w((lambda *s: torch.randn(*s, dtype=torch.bfloat16) * 0.8)(Dm, H, Dh) * Dm ** (-0.5)), 'Wk': _w((lambda *s: torch.randn(*s, dtype=torch.bfloat16) * 0.8)(Dm, H, Dh) * Dm ** (-0.5)), 'Wv': _w((lambda *s: torch.randn(*s, dtype=torch.bfloat16) * 0.8)(Dm, H, Dh) * Dm ** (-0.5)), 'Wo': _w((lambda *s: torch.randn(*s, dtype=torch.bfloat16) * 0.8)(H, Dh, Dm) * (H * Dh) ** (-0.5)), 'seg_len': seg}
    _A_in = _A_setup()

    def _B_setup():
        B, S, Dm, Df = (1, 2048, 512, 1376)
        return {'x': _w((lambda *s: torch.randn(*s, dtype=torch.bfloat16) * 0.05)(B, S, Dm)), 'w_gate': _w((lambda *s: torch.randn(*s, dtype=torch.bfloat16) * 0.4)(Dm, Df) * Dm ** (-0.5)), 'w_up': _w((lambda *s: torch.randn(*s, dtype=torch.bfloat16) * 0.4)(Dm, Df) * Dm ** (-0.5)), 'w_down': _w((lambda *s: torch.randn(*s, dtype=torch.bfloat16) * 0.4)(Df, Dm) * Df ** (-0.5))}
    _B_in = _B_setup()
    return {'A_x': _A_in['x'], 'A_mem0': _A_in['mem0'], 'A_Wq': _A_in['Wq'], 'A_Wk': _A_in['Wk'], 'A_Wv': _A_in['Wv'], 'A_Wo': _A_in['Wo'], 'A_seg_len': _A_in['seg_len'], 'B_x': _B_in['x'], 'B_w_gate': _B_in['w_gate'], 'B_w_up': _B_in['w_up'], 'B_w_down': _B_in['w_down'], 'c': _w((lambda *s: torch.randn(*s, dtype=torch.bfloat16) * 0.2)(1, 512) * 8.0), 'w_mod': _w((lambda *s: torch.randn(*s, dtype=torch.bfloat16) * 0.2)(512, 6 * 512) * 512 ** (-0.5) * 8.0)}

def reference(A_x, A_mem0, A_Wq, A_Wk, A_Wv, A_Wo, A_seg_len, B_x, B_w_gate, B_w_up, B_w_down, c, w_mod):

    def _A_ref(x, mem0, Wq, Wk, Wv, Wo, seg_len):
        B, S, Dm = x.shape
        H, Dh = (Wq.shape[1], Wq.shape[2])
        M = mem0.shape[1]
        scale = Dh ** (-0.5)
        n_seg = S // seg_len
        L = M + seg_len
        idx = torch.arange(L)
        mask = (idx[:, None] < M) | (idx[:, None] >= idx[None, :])
        mem = mem0
        outs = []
        for s in range(n_seg):
            xs = x[:, s * seg_len:(s + 1) * seg_len, :].clone()
            h = torch.concatenate([mem, xs], axis=1)
            q = torch.einsum('btd,dhe->bhte', h, Wq)
            k = torch.einsum('btd,dhe->bhte', h, Wk)
            v = torch.einsum('btd,dhe->bhte', h, Wv)
            scores = torch.einsum('bhqe,bhke->bhqk', q, k) * scale
            scores = torch.where(mask[None, None], scores, -1000000000.0)
            p = _softmax(scores, axis=-1)
            o = torch.einsum('bhqk,bhke->bhqe', p, v)
            o = torch.einsum('bhte,hed->btd', o, Wo)
            mem = o[:, :M, :].clone()
            outs.append(o[:, M:, :])
        return torch.concatenate(outs, axis=1)

    def _B_ref(x, w_gate, w_up, w_down):
        g = torch.einsum('bsd,df->bsf', x, w_gate)
        u = torch.einsum('bsd,df->bsf', x, w_up)
        h = _gelu(g) * u
        return torch.einsum('bsf,fd->bsd', h, w_down)
    x = A_x
    mod = (_silu(c) @ w_mod).reshape(c.shape[0], 6, 1, -1)
    sa, ca, ga, sb, cb, gb = (mod[:, 0].clone(), mod[:, 1].clone(), mod[:, 2].clone(), mod[:, 3].clone(), mod[:, 4].clone(), mod[:, 5].clone())
    h = _layernorm(x, axis=-1) * (1 + ca) + sa
    x = x + ga * _A_ref(h, A_mem0, A_Wq, A_Wk, A_Wv, A_Wo, A_seg_len)
    h = _layernorm(x, axis=-1) * (1 + cb) + sb
    x = x + gb * _B_ref(h, B_w_gate, B_w_up, B_w_down)
    return x
```

```python
from common import *
L_WV=0; L_KX=131072; L_MEM=139264; L_QB=147456; L_KB=149760; L_OB=152064; LDS_CHAIN=154368
AF=16; QX,QY,KX_,KY,VX,VY=48,52,56,60,64,68; VT=72; RING=80; NR=5; SD=96; WO=128
IDX=4; VMW=5; VPOLL=6; VFR=7; VQW=8; VQR=9; VPS=10; VRD=11; VMS=12; VOW=13; VVT=14; VWV=15; T0=120
CEXP=0x3e0293ee
def chain_prologue():
    C("chain prologue: lane consts")
    E("v_cmp_gt_u32 vcc, 8, v2"); E(f"v_mov_b32 v{T0}, 0xeeee"); E(f"v_mov_b32 v{T0+1}, 0x4444"); E(f"v_cndmask_b32 v{IDX}, v{T0}, v{T0+1}, vcc")
    E("s_mov_b32 s40, -1"); E("s_mov_b32 s41, 0"); E("s_mov_b32 s42, 0"); E("s_mov_b32 s43, -1")
    smov(21,0x05040100); smov(22,0x07060302)
    E("v_lshrrev_b32 v120, 1, v3"); E("v_and_b32 v121, 1, v3")
    E("v_lshlrev_b32 v122, 17, v120"); E("v_lshl_add_u32 v122, v121, 15, v122")
    E("v_lshl_add_u32 v122, v2, 2, v122"); E("s_lshl_b32 s32, s5, 8"); E(f"s_lshl_b32 s33, s{SWAVE}, 6"); E("s_add_u32 s32, s32, s33"); E("v_add_u32 v122, s32, v122")
    E(f"s_lshl_b32 s33, s{SWAVE}, 15"); E(f"v_lshlrev_b32 v{VWV}, 4, v1"); E(f"v_add_u32 v{VWV}, s33, v{VWV}")
    batches=[]
    for mi,inp in ((0,I_WQ),(1,I_WK),(2,I_WV)):
        for t in range(8): batches.append((mi,inp,t))
    TB=[16,32,48,64]
    def issue(bi):
        mi,inp,t=batches[bi]
        if t==0: srd(12 if mi%2==0 else 16,inp)
        s=12 if mi%2==0 else 16
        for q in range(8):
            for e0 in range(2):
                row=64*t+32*(q//4)+8*(q%2)+2*((q%4)//2)+e0
                smov(34,row*8192); E(f"buffer_load_dword v{TB[bi%4]+2*q+e0}, v122, {S(s)}, s34 offen")
    def consume(bi):
        mi,inp,t=batches[bi]; b=TB[bi%4]
        for beta in range(2):
            for q in range(8): E(f"v_perm_b32 v{80+beta*8+q}, v{b+2*q+1}, v{b+2*q}, s{21+beta}")
        if mi<2:
            for beta in range(2):
                for q in range(8): E(f"v_accvgpr_write_b32 a{mi*128+(t*2+beta)*8+q}, v{80+beta*8+q}")
        else:
            for beta in range(2):
                for hf in range(2): E(f"ds_write_b128 v{VWV}, v[{80+beta*8+hf*4}:{80+beta*8+hf*4+3}] offset:{(t*2+beta)*2048+hf*1024}")
            E("s_nop 1")
    n=len(batches)
    for bi in range(3): issue(bi)
    for bi in range(n):
        if bi+3<n: issue(bi+3)
        E(f"s_waitcnt vmcnt({16*min(3,n-1-bi)})"); consume(bi)
    srd(12,I_WO)
    E("v_lshlrev_b32 v122, 13, v120"); E("v_lshl_add_u32 v122, v121, 12, v122"); E("v_lshl_add_u32 v122, v2, 2, v122")
    E("s_lshl_b32 s32, s5, 17"); E(f"s_lshl_b32 s33, s{SWAVE}, 8"); E("s_add_u32 s32, s32, s33"); E("v_add_u32 v122, s32, v122")
    fr=[(p,t) for p in range(4) for t in range(4)]
    TB2=[16,24,32,40,48,56,64,72]
    def issue2(bi):
        p,t=fr[bi]
        for m in range(4):
            for e0 in range(2):
                smov(34,(32*t+16*(m//2)+2*(m%2)+e0)*1024+p*64); E(f"buffer_load_dword v{TB2[bi%8]+2*m+e0}, v122, {S(12)}, s34 offen")
    for bi in range(7): issue2(bi)
    for bi in range(16):
        if bi+7<16: issue2(bi+7)
        E(f"s_waitcnt vmcnt({8*min(7,15-bi)})"); p,t=fr[bi]; b=TB2[bi%8]
        for m in range(4):
            for beta in range(2): E(f"v_perm_b32 v{WO+(p*4+t)*8+2*m+beta}, v{b+2*m+1}, v{b+2*m}, s{21+beta}")
    C("address constants")
    E(f"s_lshl_b32 s33, s{SWAVE}, 7"); E("v_add_u32 v120, s33, v1"); E("v_lshrrev_b32 v121, 2, v120")
    E("v_and_b32 v122, 3, v120"); E("v_lshlrev_b32 v122, 5, v122")
    E("v_lshrrev_b32 v123, 4, v121"); E("v_lshl_add_u32 v122, v123, 10, v122")
    E("v_bfe_u32 v123, v121, 2, 2"); E("v_lshl_add_u32 v122, v123, 8, v122")
    E("v_bfe_u32 v123, v121, 1, 1"); E("v_lshl_add_u32 v122, v123, 7, v122")
    E("v_and_b32 v123, 1, v121"); E("v_lshl_add_u32 v122, v123, 3, v122"); E(f"v_add_u32 v{VMW}, {L_MEM}, v122")
    E(f"s_lshl_b32 s33, s{SWAVE}, 11"); E(f"v_lshlrev_b32 v{VPOLL}, 4, v1"); E(f"v_add_u32 v{VPOLL}, s33, v{VPOLL}")
    E(f"v_lshlrev_b32 v{VFR}, 4, v1"); E(f"v_add_u32 v0, {L_KX}, v{VFR}")
    E("v_and_b32 v120, 1, v3"); E("v_mul_u32_u24 v120, 1088, v120"); E("v_lshl_add_u32 v120, v2, 2, v120"); E("v_lshrrev_b32 v121, 1, v3"); E("v_lshl_add_u32 v120, v121, 1, v120")
    E(f"s_lshl_b32 s33, s{SWAVE}, 6"); E(f"s_add_u32 s33, s33, {L_QB}"); E(f"v_add_u32 v{VQW}, s33, v120")
    E("v_and_b32 v120, 7, v2"); E("v_mul_u32_u24 v120, 272, v120"); E("v_lshl_add_u32 v120, v3, 4, v120"); E(f"v_add_u32 v{VQR}, {L_QB}, v120")
    E(f"s_lshl_b32 s33, s{SWAVE}, 6"); E(f"s_add_u32 s33, s33, {L_OB}"); E(f"v_add_u32 v{VOW}, s33, v120")
    E("v_lshrrev_b32 v120, 1, v2"); E("v_lshlrev_b32 v120, 12, v120"); E("v_and_b32 v121, 1, v2"); E("v_lshl_add_u32 v120, v121, 6, v120")
    E("v_lshrrev_b32 v121, 1, v3"); E("v_lshl_add_u32 v120, v121, 5, v120"); E("v_and_b32 v121, 1, v3"); E("v_lshl_add_u32 v120, v121, 4, v120")
    E(f"s_lshl_b32 s33, s{SWAVE}, 17"); E("s_lshl_b32 s34, s5, 7"); E("s_add_u32 s33, s33, s34"); E(f"v_add_u32 v{VPS}, s33, v120")
    E(f"s_lshl_b32 s33, s5, 2"); E(f"s_add_u32 s33, s33, s{SWAVE}"); E("s_lshl_b32 s34, s33, 12"); E(f"v_add_u32 v{VRD}, s34, v{VFR}")
    E("v_and_b32 v120, 1, v1"); E("v_lshlrev_b32 v120, 5, v120"); E("v_bfe_u32 v121, v1, 4, 1"); E("v_lshl_add_u32 v120, v121, 4, v120")
    E("v_bfe_u32 v121, v1, 5, 1"); E("v_lshl_add_u32 v120, v121, 3, v120"); E("v_bfe_u32 v121, v1, 2, 1"); E("v_lshl_add_u32 v120, v121, 2, v120")
    E("s_lshl_b32 s34, s33, 6"); E(f"v_add_u32 v{VMS}, s34, v120")
    E("s_mov_b32 s44, 0x00330033"); E("s_mov_b32 s45, 0x00330033")
    E(f"v_mov_b32 v{VVT}, v{VPOLL}")
    smov(46,CEXP)
def prefetch_kv(sreg_seg):
    E(f"s_lshl_b32 s34, s{sreg_seg}, 5"); E("s_add_u32 s34, s34, s5"); E("s_lshl_b32 s34, s34, 13")
    E(f"s_add_u32 s35, s34, {hex(WS_K)}"); E(f"s_add_u32 s36, s34, {hex(WS_VT)}")
    E(f"s_lshl_b32 s37, s{SWAVE}, 11"); E(f"s_add_u32 s37, s37, {L_KX}"); E("s_mov_b32 m0, s37"); E("s_nop 0")
    E(f"buffer_load_dwordx4 v{VPOLL}, {S(SW)}, s35 offen sc1 lds");
    E(f"buffer_load_dwordx4 v{VPOLL}, {S(SW)}, s35 offen offset:1024 sc1 lds")
    E(f"buffer_load_dwordx4 v[{VT}:{VT+3}], v{VVT}, {S(SW)}, s36 offen sc1"); E(f"buffer_load_dwordx4 v[{VT+4}:{VT+7}], v{VVT}, {S(SW)}, s36 offen offset:1024 sc1")
def ringload(f):
    b=RING+(f%NR)*8
    return [f"ds_read_b128 v[{b}:{b+3}], v{VWV} offset:{f*2048}", f"ds_read_b128 v[{b+4}:{b+7}], v{VWV} offset:{f*2048+1024}"]
def spin_guard(lbl_fail):
    E("s_add_u32 s61, s61, 1"); E("s_cmp_gt_u32 s61, 0x80000"); E(f"s_cbranch_scc1 {lbl_fail}")
def chain_loop(fast):
    st="" if fast else " sc1"
    top=uid("ctop"); fin=uid("cfin"); done=uid("cdone")
    E("s_mov_b32 s50, 0")
    E(f"s_mov_b32 s35, {C_QKV*64}"); wait_cnt(35,24); prefetch_kv(50)
    L(top)
    for f in range(NR):
        for x in ringload(f): E(x)
    for r in range(24): E(f"v_mov_b32 v{QX+r}, 0")
    E("s_lshl_b32 s51, s50, 13"); E(f"s_add_u32 s51, s51, {hex(WS_MEM)}")
    pl=uid("pm"); pd=uid("pmd")
    L(pl)
    E(f"buffer_load_dwordx4 v[16:19], v{VPOLL}, {S(SW)}, s51 offen sc1"); E(f"buffer_load_dwordx4 v[20:23], v{VPOLL}, {S(SW)}, s51 offen offset:1024 sc1")
    spin_guard(pd)
    E("s_waitcnt vmcnt(0)")
    E("v_max3_u32 v24, v16, v17, v18"); E("v_max3_u32 v25, v19, v20, v21"); E("v_max3_u32 v24, v22, v23, v24"); E("v_max_u32 v24, v24, v25")
    E("v_cmp_eq_u32 vcc, -1, v24"); E(f"s_cbranch_vccnz {pl}")
    L(pd)
    E(f"ds_write_b64 v{VMW}, v[16:17]"); E(f"ds_write_b64 v{VMW}, v[18:19] offset:16"); E(f"ds_write_b64 v{VMW}, v[20:21] offset:1024"); E(f"ds_write_b64 v{VMW}, v[22:23] offset:1040")
    E("s_waitcnt lgkmcnt(0)"); E("s_barrier")
    for t in range(8): E(f"ds_read_b128 v[{AF+4*t}:{AF+4*t+3}], v0 offset:{L_MEM-L_KX+t*1024}")
    l=uid("sk"); E("s_cmp_eq_u32 s50, 0"); E(f"s_cbranch_scc1 {l}"); E(f"s_cmp_lg_u32 s{SWAVE}, 0"); E(f"s_cbranch_scc1 {l}")
    E(f"s_add_u32 s34, s50, {C_KV-1}"); E("s_lshl_b32 s34, s34, 6"); E("v_mov_b32 v120, 0"); E("v_mov_b32 v121, 1"); E("s_mov_b64 exec, 1")
    E(f"buffer_atomic_add v121, v120, {S(SW)}, s34 offen sc1"); E("s_mov_b64 exec, -1"); L(l)
    lds_out=8
    issued=[("AF",t) for t in range(8)]
    def waitfor(key):
        if key not in issued: return
        idx=len(issued)-1-issued[::-1].index(key); n=len(issued)-1-idx
        E(f"s_waitcnt lgkmcnt({min(n,15)})"); del issued[:idx+1]
    nxt=NR
    for t in range(8):
        waitfor(("AF",t))
        for (acc,mi) in ((QX,0),(KX_,1)):
            for b in range(2):
                E(f"v_smfmac_f32_16x16x64_bf16 v[{acc+4*b}:{acc+4*b+3}], v[{AF+4*t}:{AF+4*t+3}], a[{mi*128+(t*2+b)*8}:{mi*128+(t*2+b)*8+7}], v{IDX}")
        for b in range(2):
            f=t*2+b; waitfor(("R",f)); rb=RING+(f%NR)*8
            E(f"v_smfmac_f32_16x16x64_bf16 v[{VX+4*b}:{VX+4*b+3}], v[{AF+4*t}:{AF+4*t+3}], v[{rb}:{rb+7}], v{IDX}")
            if nxt<16:
                for x in ringload(nxt): E(x)
                issued.append(("Rh",nxt)); issued.append(("R",nxt)); nxt+=1
    for i in range(8): E(f"ds_read_b128 v[{AF+4*i}:{AF+4*i+3}], v0 offset:{i*1024}")
    E("s_nop 7")
    for (x,y) in ((QX,QY),(KX_,KY),(VX,VY)):
        for r in range(4): E(f"v_permlane32_swap_b32 v{x+r}, v{y+r}")
        E("s_nop 0")
        for r in range(4): E(f"v_add_f32 v{x+r}, v{x+r}, v{y+r}")
        E(f"v_cvt_pk_bf16_f32 v{y}, v{x}, v{x+1}"); E(f"v_cvt_pk_bf16_f32 v{y+1}, v{x+2}, v{x+3}")
        if x!=VX:
            off=0 if x==QX else L_KB-L_QB
            for r in range(4): E(f"ds_write_b16{'_d16_hi' if r%2 else ''} v{VQW}, v{y+r//2} offset:{off+r*272}")
    E("s_lshl_b32 s52, s50, 5"); E("s_add_u32 s52, s52, s5"); E("s_lshl_b32 s52, s52, 11")
    E(f"s_lshl_b32 s53, s{SWAVE}, 9"); E("s_add_u32 s53, s53, s52"); E(f"s_add_u32 s53, s53, {hex(WS_VM)}"); E(f"v_lshrrev_b32 v120, 1, v{VFR}")
    E(f"buffer_store_dwordx2 v[{VY}:{VY+1}], v120, {S(SW)}, s53 offen sc1")
    E("s_waitcnt lgkmcnt(0)"); E("s_barrier")
    for t in range(4): E(f"ds_read_b128 v[{QX+4*t}:{QX+4*t+3}], v{VQR} offset:{t*64}")
    for t in range(4): E(f"ds_read_b128 v[{RING+4*t}:{RING+4*t+3}], v{VQR} offset:{L_KB-L_QB+t*64}")
    E("v_and_b32 v120, 7, v2"); E("v_lshlrev_b32 v120, 8, v120"); E("v_lshl_add_u32 v120, v3, 4, v120"); E(f"s_lshl_b32 s34, s{SWAVE}, 6"); E("v_add_u32 v120, s34, v120")
    E(f"s_add_u32 s53, s52, {hex(WS_KM)}")
    E(f"v_add_u32 v121, {L_KB-L_OB}, v{VOW}"); E("ds_read_b128 v[112:115], v121")
    for t in range(4):
        E(f"s_waitcnt lgkmcnt({8-t})")
        for kt in range(2):
            E(f"v_mfma_f32_16x16x32_bf16 v[{SD+4+4*kt}:{SD+7+4*kt}], v[{AF+(kt*4+t)*4}:{AF+(kt*4+t)*4+3}], v[{QX+4*t}:{QX+4*t+3}], {'0' if t==0 else V(SD+4+4*kt,4)}")
    E("s_waitcnt lgkmcnt(0)")
    E(f"buffer_store_dwordx4 v[112:115], v120, {S(SW)}, s53 offen sc1")
    E("s_cmp_eq_u32 s50, 63"); E(f"s_cbranch_scc1 {fin}")
    for t in range(4): E(f"v_mfma_f32_16x16x32_bf16 v[{SD}:{SD+3}], v[{RING+4*t}:{RING+4*t+3}], v[{QX+4*t}:{QX+4*t+3}], {'0' if t==0 else V(SD,4)}")
    E("s_nop 7")
    M=116
    E(f"v_max3_f32 v{M}, v{SD+4}, v{SD+5}, v{SD+6}"); E(f"v_max3_f32 v{M+1}, v{SD+7}, v{SD+8}, v{SD+9}"); E(f"v_max3_f32 v{M}, v{SD+10}, v{SD+11}, v{M}")
    E(f"v_max3_f32 v{M+1}, v{SD}, v{SD+1}, v{M+1}"); E(f"v_max3_f32 v{M}, v{SD+2}, v{SD+3}, v{M}"); E(f"v_max_f32 v{M}, v{M}, v{M+1}")
    greduce(M,M+1,"v_max_f32")
    E(f"v_mul_f32 v{M}, s46, v{M}")
    for i in list(range(4,12))+list(range(4)): E(f"v_fma_f32 v{SD+i}, v{SD+i}, s46, -v{M}")
    for i in list(range(4,12))+list(range(4)): E(f"v_exp_f32 v{SD+i}, v{SD+i}")
    P=QX
    E("s_nop 0")
    for q in range(4): E(f"v_cvt_pk_bf16_f32 v{P+q}, v{SD+4+2*q}, v{SD+5+2*q}")
    E(f"v_cvt_pk_bf16_f32 v{P+4}, v{SD}, v{SD+1}"); E(f"v_cvt_pk_bf16_f32 v{P+5}, v{SD+2}, v{SD+3}")
    O=KX_+4
    OX=60; OY=112
    E(f"v_mfma_f32_16x16x32_bf16 v[{OX}:{OX+3}], v[{VT}:{VT+3}], v[{P}:{P+3}], 0")
    E(f"v_mfma_f32_16x16x32_bf16 v[{OY}:{OY+3}], v[{VT+4}:{VT+7}], v[{P}:{P+3}], 0")
    for q in range(2):
        E(f"v_cndmask_b32 v{P+6+q}, 0, v{P+4+q}, s[40:41]"); E(f"v_cndmask_b32 v{P+8+q}, 0, v{P+4+q}, s[42:43]")
    E("s_nop 1")
    E(f"v_mfma_f32_16x16x16_bf16 v[{OX}:{OX+3}], v[{VY}:{VY+1}], v[{P+6}:{P+7}], v[{OX}:{OX+3}]")
    E(f"v_mfma_f32_16x16x16_bf16 v[{OY}:{OY+3}], v[{VY}:{VY+1}], v[{P+8}:{P+9}], v[{OY}:{OY+3}]")
    E(f"v_add_f32 v{M}, v{SD}, v{SD+1}"); E(f"v_add_f32 v{M+1}, v{SD+2}, v{SD+3}"); E(f"v_add_f32 v{M}, v{M}, v{M+1}"); E(f"v_cndmask_b32 v{M}, 0, v{M}, s[40:41]")
    E(f"v_add_f32 v{M+1}, v{SD+4}, v{SD+5}"); E(f"v_add_f32 v{M+2}, v{SD+6}, v{SD+7}"); E(f"v_add_f32 v{M+3}, v{SD+8}, v{SD+9}"); E(f"v_add_f32 v{M}, v{M}, v{SD+10}")
    E(f"v_add_f32 v{M+1}, v{M+1}, v{SD+11}"); E(f"v_add_f32 v{M+2}, v{M+2}, v{M+3}"); E(f"v_add_f32 v{M}, v{M}, v{M+1}"); E(f"v_add_f32 v{M}, v{M}, v{M+2}")
    greduce(M,M+1,"v_add_f32")
    E(f"v_rcp_f32 v{M}, v{M}"); E("s_nop 4")
    for r in range(4): E(f"v_mul_f32 v{OX+r}, v{OX+r}, v{M}"); E(f"v_mul_f32 v{OY+r}, v{OY+r}, v{M}")
    for r in range(4): E(f"v_cvt_pk_bf16_f32 v{SD+r}, v{OX+r}, v{OY+r}")
    E(f"ds_write_b128 v{VOW}, v[{SD}:{SD+3}]")
    for r in range(16): E(f"v_mov_b32 v{AF+r}, 0")
    E("s_waitcnt lgkmcnt(0)"); E("s_barrier")
    E(f"v_add_u32 v120, {L_OB-L_QB}, v{VQR}")
    for t in range(4): E(f"ds_read_b128 v[{QX+4*t}:{QX+4*t+3}], v120 offset:{t*64}")
    E("s_add_u32 s54, s50, 1")
    for t in range(4):
        E(f"s_waitcnt lgkmcnt({3-t})")
        for p in range(4): E(f"v_smfmac_f32_16x16x64_bf16 v[{AF+4*p}:{AF+4*p+3}], v[{QX+4*t}:{QX+4*t+3}], v[{WO+(p*4+t)*8}:{WO+(p*4+t)*8+7}], v{IDX}")
    E("s_and_b32 s34, s50, 1"); E("s_lshl_b32 s34, s34, 19"); E(f"s_add_u32 s55, s34, {hex(WS_PART)}")
    E("s_mov_b32 s56, s55"); E("s_nop 4")
    for p in range(4):
        E(f"buffer_store_dwordx4 v[{AF+4*p}:{AF+4*p+3}], v{VPS}, {S(SW)}, s56 offen{st}"); E("s_add_u32 s56, s56, 0x8000")
    l=uid("nw"); E("s_and_b32 s34, s54, 1"); E(f"s_cbranch_scc1 {l}")
    E("s_lshr_b32 s35, s54, 1"); E(f"s_add_u32 s35, s35, {C_QKV}"); E("s_lshl_b32 s35, s35, 6"); wait_cnt(35,24); L(l)
    prefetch_kv(54)
    pl=uid("pr"); pd=uid("prd"); R=96
    L(pl)
    for u in range(4): E(f"buffer_load_dwordx4 v[{R+4*u}:{R+4*u+3}], v{VRD}, {S(SW)}, s55 offen offset:{u*1024} sc1")
    spin_guard(pd)
    E("s_waitcnt vmcnt(0)")
    E(f"v_max3_u32 v112, v{R}, v{R+4}, v{R+8}"); E(f"v_max_u32 v112, v112, v{R+12}"); E("v_cmp_eq_u32 vcc, -1, v112"); E(f"s_cbranch_vccnz {pl}")
    L(pd)
    for r in range(4): E(f"v_add_f32 v{R+r}, v{R+r}, v{R+4+r}"); E(f"v_add_f32 v{R+8+r}, v{R+8+r}, v{R+12+r}")
    for r in range(4): E(f"v_add_f32 v{R+r}, v{R+r}, v{R+8+r}")
    E("s_nop 1")
    for r in range(4): E(f"v_add_f32_dpp v{R+r}, v{R+r}, v{R+r} row_ror:8 row_mask:0xf bank_mask:0xf")
    E("s_nop 1"); E(f"v_permlane32_swap_b32 v{R}, v{R+1}"); E(f"v_permlane32_swap_b32 v{R+2}, v{R+3}"); E("s_nop 1")
    E(f"v_add_f32 v{R}, v{R}, v{R+1}"); E(f"v_add_f32 v{R+2}, v{R+2}, v{R+3}"); E("s_nop 1")
    E(f"v_permlane16_swap_b32 v{R}, v{R+2}"); E("s_nop 1"); E(f"v_add_f32 v{R}, v{R}, v{R+2}"); E("s_nop 1")
    E(f"v_mov_b32_dpp v{R+1}, v{R} quad_perm:[2,3,0,1] row_mask:0xf bank_mask:0xf"); E("s_nop 0")
    E(f"v_cvt_pk_bf16_f32 v{R}, v{R}, v{R+1}")
    E("s_add_u32 s34, s51, 0x2000"); E("s_mov_b64 exec, s[44:45]")
    E(f"buffer_store_dword v{R}, v{VMS}, {S(SW)}, s34 offen{st}"); E("s_mov_b64 exec, -1")
    for r in range(4): E(f"v_mov_b32 v{R+4+r}, -1")
    for u in range(4): E(f"buffer_store_dwordx4 v[{R+4}:{R+7}], v{VRD}, {S(SW)}, s55 offen offset:{u*1024}{st}")
    E("s_add_u32 s50, s50, 1"); E(f"s_branch {top}")
    L(fin)
    E(f"s_mov_b32 s34, {(C_KV+63)*64}"); signal_cnt(34)
```

```python
NAME="adaLN_cond__memory_aug_recurrent_mem_tr__glu_gated_geglu__prompt"
out=[]
import re
def E(s):
    if s.startswith("buffer_"):
        m=re.search(r"offset:(\d+)",s)
        assert not m or int(m.group(1))<4096, s
    out.append("    "+s)
def L(s): out.append(s+":")
def C(s): out.append("    ; "+s)
_uid=[0]
def uid(p):
    _uid[0]+=1; return f"L{p}_{_uid[0]}"
WS_CNT=0x0; WS_MOD=0x8000; WS_MEM=0x10000; WS_PART=0x100000; WS_H1=0x200000; WS_X1=0x400000; WS_H2=0x600000
WS_HF=0x800000; WS_KM=0x1000000; WS_VM=0x1400000; WS_Q=0x2000000; WS_K=0x3000000; WS_VT=0x4000000; WS_PO=0x5000000
WS_SIZE=0x10000000
HFW=1408
C_LN1=0; C_QKV=32; C_KV=64; C_A=128; C_B=192; C_C=256; NCNT=320
I_X,I_MEM0,I_WQ,I_WK,I_WV,I_WO,I_SEG,I_BX,I_WG,I_WU,I_WD,I_C,I_WMOD,I_OUT,I_DBG,I_WS=range(16)
SZ={I_X:2048*512*2,I_MEM0:8*512*2,I_WQ:512*4096*2,I_WK:512*4096*2,I_WV:512*4096*2,I_WO:4096*512*2,I_WG:512*1376*2,I_WU:512*1376*2,
    I_WD:1376*512*2,I_C:1024,I_WMOD:512*3072*2,I_OUT:2048*512*2,I_DBG:256,I_WS:WS_SIZE}
PB=64
def ptr(i): return PB+2*i
def load_ptrs():
    E("s_load_dwordx16 s[64:79], s[0:1], 0"); E("s_load_dwordx16 s[80:95], s[0:1], 64"); E("s_waitcnt lgkmcnt(0)")
def srd(d,i,size=None):
    E(f"s_mov_b32 s{d}, s{ptr(i)}"); E(f"s_and_b32 s{d+1}, s{ptr(i)+1}, 0xffff")
    E(f"s_mov_b32 s{d+2}, {hex(size if size else SZ[i])}"); E(f"s_mov_b32 s{d+3}, 0x20000")
def S(d,n=4): return f"s[{d}:{d+n-1}]"
def V(d,n=1): return f"v{d}" if n==1 else f"v[{d}:{d+n-1}]"
def A(d,n=1): return f"a{d}" if n==1 else f"a[{d}:{d+n-1}]"
SW=8
def smov(d,val): E(f"s_mov_b32 s{d}, {hex(val) if isinstance(val,int) and (val>64 or val<-16) else val}")
def xreduce(v,t,op,full=True):
    for ctl in ["quad_perm:[1,0,3,2]","quad_perm:[2,3,0,1]","row_half_mirror","row_mirror"]:
        E("s_nop 1"); E(f"{op}_dpp v{v}, v{v}, v{v} {ctl} row_mask:0xf bank_mask:0xf")
    greduce(v,t,op)
def greduce(v,t,op):
    for sw in ["v_permlane16_swap_b32","v_permlane32_swap_b32"]:
        E(f"v_mov_b32 v{t}, v{v}"); E("s_nop 1"); E(f"{sw} v{v}, v{t}"); E("s_nop 1"); E(f"{op} v{v}, v{v}, v{t}")
CFG={"sync":True,"wv":250}
def wait_cnt(idx_sreg_off, target, tmpv=None, label="w"):
    if not CFG["sync"]: return
    a=CFG["wv"]; b=a+1
    l=uid(label); d=uid(label+"d")
    E(f"v_mov_b32 v{a}, 0")
    L(l)
    E(f"buffer_load_dword v{b}, v{a}, {S(SW)}, s{idx_sreg_off} offen sc1")
    E("s_add_u32 s61, s61, 1"); E("s_cmp_gt_u32 s61, 0x80000"); E(f"s_cbranch_scc1 {d}")
    E("s_waitcnt vmcnt(0)"); E(f"v_readfirstlane_b32 s60, v{b}"); E("s_nop 3")
    E(f"s_cmp_ge_u32 s60, {target}"); E(f"s_cbranch_scc1 {d}"); E("s_sleep 2"); E(f"s_branch {l}")
    L(d)
def signal_cnt(idx_sreg_off):
    l=uid("sg"); a=CFG["wv"]; b=a+1
    E("s_waitcnt vmcnt(0) lgkmcnt(0)"); E("s_barrier")
    if not CFG["sync"]: return
    E(f"s_cmp_lg_u32 s{SWAVE}, 0"); E(f"s_cbranch_scc1 {l}")
    E(f"v_mov_b32 v{a}, 0"); E(f"v_mov_b32 v{b}, 1"); E("s_mov_b64 exec, 1")
    E(f"buffer_atomic_add v{b}, v{a}, {S(SW)}, s{idx_sreg_off} offen sc1")
    E("s_mov_b64 exec, -1")
    L(l)
SWAVE=4
def kd(name,vgpr,acc,sgpr=102):
    return f""".section .rodata,"a"
.p2align 6
.amdhsa_kernel {name}
  .amdhsa_next_free_vgpr {vgpr}
  .amdhsa_next_free_sgpr {sgpr}
  .amdhsa_accum_offset {acc}
  .amdhsa_group_segment_fixed_size 0
  .amdhsa_kernarg_size 128
  .amdhsa_user_sgpr_count 2
  .amdhsa_user_sgpr_kernarg_segment_ptr 1
  .amdhsa_system_sgpr_workgroup_id_x 1
.end_amdhsa_kernel
.text
"""
def khead(name):
    out.append(f".globl {name}\n.p2align 8\n.type {name},@function"); L(name)
def cvt_bf16_round_f32(v,t):
    E(f"v_cvt_pk_bf16_f32 v{v}, v{v}, v{v}"); E(f"v_lshlrev_b32 v{v}, 16, v{v}")

def lane_setup():
    E("v_and_b32 v1, 63, v0"); E("v_and_b32 v2, 15, v0"); E("v_bfe_u32 v3, v0, 4, 2"); E("v_lshrrev_b32 v4, 6, v0"); E("s_nop 0")
    E(f"v_readfirstlane_b32 s{SWAVE}, v4"); E("s_nop 3")
```

```python
from common import *
import common
def k0():
    name="init_kernel"; khead(name)
    E("s_cmp_ge_u32 s2, 256"); E("s_cbranch_scc1 L_k0_end")
    load_ptrs(); srd(SW,I_WS)
    E("v_lshlrev_b32 v1, 4, v0")
    E("s_lshl_b32 s3, s2, 12"); E("v_add_u32 v1, s3, v1")
    for i in range(4): E(f"v_mov_b32 v{4+i}, -1"); E(f"v_mov_b32 v{8+i}, 0")
    smov(20,WS_PART); E(f"buffer_store_dwordx4 v[4:7], v1, {S(SW)}, s20 offen")
    E("s_cmp_ge_u32 s2, 144"); E("s_cbranch_scc1 L_k0_a")
    smov(20,WS_MEM); E(f"buffer_store_dwordx4 v[4:7], v1, {S(SW)}, s20 offen")
    L("L_k0_a")
    E("s_cmp_ge_u32 s2, 8"); E("s_cbranch_scc1 L_k0_b")
    E(f"buffer_store_dwordx4 v[8:11], v1, {S(SW)}, 0 offen")
    L("L_k0_b")
    E("s_cmp_ge_u32 s2, 2"); E("s_cbranch_scc1 L_k0_c")
    srd(12,I_MEM0)
    E("s_lshl_b32 s3, s2, 8"); E("v_add_u32 v12, s3, v0")
    E("v_lshrrev_b32 v13, 2, v12"); E("v_lshlrev_b32 v13, 3, v13")
    E("v_and_b32 v14, 3, v12"); E("v_lshlrev_b32 v14, 11, v14"); E("v_add_u32 v13, v13, v14")
    E(f"buffer_load_dwordx2 v[4:5], v13, {S(12)}, 0 offen"); E(f"buffer_load_dwordx2 v[6:7], v13, {S(12)}, 0 offen offset:1024")
    E("s_waitcnt vmcnt(0)")
    smov(20,WS_MEM); E(f"buffer_store_dwordx4 v[4:7], v1, {S(SW)}, s20 offen")
    L("L_k0_c")
    E("s_cmp_ge_u32 s2, 96"); E("s_cbranch_scc1 L_k0_end")
    srd(12,I_WMOD); srd(16,I_C)
    E("v_lshrrev_b32 v20, 4, v0")
    E("v_and_b32 v21, 15, v0")
    E("v_mul_u32_u24 v22, 196608, v20" )
    E("v_lshl_add_u32 v22, v21, 2, v22"); E("s_lshl_b32 s3, s2, 6"); E("v_add_u32 v22, s3, v22")
    E("v_lshlrev_b32 v23, 6, v20")
    for i in range(4): E(f"buffer_load_dwordx4 v[{24+4*i}:{27+4*i}], v23, {S(16)}, 0 offen offset:{16*i}")
    for i in range(32):
        smov(20,i*6144); E(f"buffer_load_dword v{64+i}, v22, {S(12)}, s20 offen")
    E("v_mov_b32 v40, 0"); E("v_mov_b32 v41, 0"); smov(21,0xbfb8aa3b)
    E("s_waitcnt vmcnt(32)")
    for i in range(32):
        src=24+i//2; d=100+i
        E(f"v_lshlrev_b32 v{d}, 16, v{src}" if i%2==0 else f"v_and_b32 v{d}, 0xffff0000, v{src}")
        E(f"v_mul_f32 v42, s21, v{d}"); E("v_exp_f32 v42, v42"); E("s_nop 0"); E("v_add_f32 v42, 1.0, v42"); E("v_rcp_f32 v42, v42"); E("s_nop 0")
        E(f"v_mul_f32 v{d}, v{d}, v42"); cvt_bf16_round_f32(d,None)
    E("s_waitcnt vmcnt(0)")
    for i in range(32):
        E(f"v_lshlrev_b32 v42, 16, v{64+i}"); E(f"v_and_b32 v43, 0xffff0000, v{64+i}")
        E(f"v_fmac_f32 v40, v{100+i}, v42"); E(f"v_fmac_f32 v41, v{100+i}, v43")
    E("v_lshlrev_b32 v44, 3, v0"); E("ds_write_b64 v44, v[40:41]"); E("s_waitcnt lgkmcnt(0)"); E("s_barrier")
    E("v_cmp_gt_u32 vcc, 16, v0"); E("s_and_saveexec_b64 s[22:23], vcc"); E("s_cbranch_execz L_k0_end")
    for i in range(16): E(f"ds_read_b64 v[{64+2*i}:{65+2*i}], v44 offset:{i*128}")
    E("s_waitcnt lgkmcnt(0)")
    for i in range(1,16): E(f"v_add_f32 v64, v64, v{64+2*i}"); E(f"v_add_f32 v65, v65, v{65+2*i}")
    cvt_bf16_round_f32(64,None); cvt_bf16_round_f32(65,None)
    E("s_lshl_b32 s3, s2, 7"); E("v_add_u32 v44, s3, v44"); smov(20,WS_MOD)
    E(f"buffer_store_dwordx2 v[64:65], v44, {S(SW)}, s20 offen")
    L("L_k0_end"); E("s_endpgm"); out.append(kd(name,136,136))

def unpack8(src,dst):
    for i in range(4):
        E(f"v_lshlrev_b32 v{dst+2*i}, 16, v{src+i}"); E(f"v_and_b32 v{dst+2*i+1}, 0xffff0000, v{src+i}")
def ln_row(x,sc,sh,t,dst):
    E(f"v_add_f32 v{t}, v{x}, v{x+1}")
    for i in range(2,8): E(f"v_add_f32 v{t}, v{t}, v{x+i}")
    xreduce(t,t+1,"v_add_f32"); E(f"v_mul_f32 v{t}, 0x3b000000, v{t}")
    for i in range(8): E(f"v_sub_f32 v{x+i}, v{x+i}, v{t}")
    E(f"v_mul_f32 v{t}, v{x}, v{x}")
    for i in range(1,8): E(f"v_fmac_f32 v{t}, v{x+i}, v{x+i}")
    xreduce(t,t+1,"v_add_f32"); E(f"v_mov_b32 v{t+1}, 0x3727c5ac"); E(f"v_fmac_f32 v{t+1}, 0x3b000000, v{t}")
    E(f"v_rsq_f32 v{t}, v{t+1}"); E("s_nop 0")
    for i in range(8): E(f"v_mul_f32 v{x+i}, v{x+i}, v{t}"); E(f"v_fma_f32 v{x+i}, v{x+i}, v{sc+i}, v{sh+i}")
    for i in range(4): E(f"v_cvt_pk_bf16_f32 v{dst+i}, v{x+2*i}, v{x+2*i+1}")
def load_mod8(dst,chunk,voff):
    smov(20,WS_MOD+chunk*2048)
    E(f"buffer_load_dwordx4 v[{dst}:{dst+3}], v{voff}, {S(SW)}, s20 offen"); E(f"buffer_load_dwordx4 v[{dst+4}:{dst+7}], v{voff}, {S(SW)}, s20 offen offset:16")
def one_plus(sc):
    for i in range(8): E(f"v_add_f32 v{sc+i}, 1.0, v{sc+i}"); cvt_bf16_round_f32(sc+i,None)
def ln1_task():
    srd(16,I_X)
    E("v_lshlrev_b32 v4, 5, v1"); load_mod8(16,0,4); load_mod8(24,1,4)
    E("s_lshl_b32 s32, s5, 4"); E(f"s_lshl_b32 s33, s{SWAVE}, 2"); E("s_add_u32 s32, s32, s33"); E("s_lshl_b32 s32, s32, 10")
    E("v_lshlrev_b32 v5, 4, v1")
    for i in range(4): E(f"buffer_load_dwordx4 v[{32+4*i}:{35+4*i}], v5, {S(16)}, s32 offen offset:{1024*i}")
    E("s_waitcnt vmcnt(4)"); one_plus(24)
    E(f"s_add_u32 s33, s32, {hex(WS_H1)}")
    for i in range(4):
        E(f"s_waitcnt vmcnt({3-i})" if i==0 else "s_nop 0")
        if i==0: E("s_waitcnt vmcnt(0)")
        unpack8(32+4*i,48); ln_row(48,24,16,56,60)
        E(f"buffer_store_dwordx4 v[60:63], v5, {S(SW)}, s33 offen offset:{1024*i} sc1"); E("s_nop 1")
    E("s_lshr_b32 s34, s5, 2"); E(f"s_add_u32 s34, s34, {C_LN1}"); E("s_lshl_b32 s34, s34, 6")
    signal_cnt(34)

RB=16; FR=112; AB=176
def gemm(MT,nk,aload,bsrd,vB,bstride,breg_ready=False):
    pre = aload is None
    Ln = 8+(0 if pre else MT)
    def areg(t,mt): return AB+((t*MT+mt)*4 if pre else ((t%4)*MT+mt)*4)
    def loads(t):
        o=[]
        for i in range(8): o.append(f"buffer_load_dwordx4 v[{RB+(t%3)*32+4*i}:{RB+(t%3)*32+4*i+3}], v{vB}, {S(bsrd)}, s{24+i} offen")
        if not pre:
            for mt in range(MT): o.append(aload(t,areg(t,mt),mt))
        o.append(f"v_add_u32 v{vB}, s23, v{vB}")
        return o
    def perms(t):
        o=[]; rb=RB+(t%3)*32; fr=FR+(t%2)*32
        for j in range(8):
            for ii in range(4):
                o.append(f"v_perm_b32 v{fr+4*j+ii}, v{rb+(2*ii+1)*4+j//2}, v{rb+(2*ii)*4+j//2}, s{21 if j%2==0 else 22}")
        return o
    smov(21,0x05040100); smov(22,0x07060302); smov(23,32*bstride)
    for i in range(8): smov(24+i,i*bstride)
    for t in range(min(3,nk)):
        for x in loads(t): E(x)
    E(f"s_waitcnt vmcnt({Ln*(min(3,nk)-1)})")
    for x in perms(0): E(x)
    for t in range(nk):
        outst = Ln if t+2<nk else 0
        E(f"s_waitcnt vmcnt({outst})")
        fill=[]
        if t+1<nk: fill+=perms(t+1)
        ld = loads(t+3) if t+3<nk else []
        mf=[]
        for j in range(8):
            for mt in range(MT):
                d=(mt*8+j)*4; c = "0" if t==0 else A(d,4)
                mf.append(f"v_mfma_f32_16x16x32_bf16 {A(d,4)}, v[{areg(t,mt)}:{areg(t,mt)+3}], v[{FR+(t%2)*32+4*j}:{FR+(t%2)*32+4*j+3}], {c}")
        fill = ld+fill
        n=len(mf); k=0
        E("s_nop 1")
        for i,m in enumerate(mf):
            E(m)
            tgt=(len(fill)*(i+1)+n-1)//n
            while k<tgt and k<len(fill): E(fill[k]); k+=1
    E("s_nop 7"); E("s_nop 7")
def rdacc(v,a): E(f"v_accvgpr_read_b32 v{v}, a{a}")

def qkv_task():
    E("s_mul_hi_u32 s33, s32, 0xaaaaaab"); E("s_mul_i32 s34, s33, 24"); E("s_sub_u32 s34, s32, s34")
    E(f"s_add_u32 s35, s33, {C_LN1}"); E("s_lshl_b32 s35, s35, 6"); wait_cnt(35,4)
    E("s_lshl_b32 s34, s34, 2"); E(f"s_add_u32 s34, s34, s{SWAVE}")
    E("s_lshr_b32 s36, s34, 5"); E("s_and_b32 s37, s34, 31")
    E("s_lshl_b32 s38, s36, 1")
    srd(12,I_WQ)
    for m,i in ((1,I_WK),(2,I_WV)):
        l=uid("m"); E(f"s_cmp_lg_u32 s36, {m}"); E(f"s_cbranch_scc1 {l}"); srd(12,i); L(l)
    E("v_lshlrev_b32 v4, 16, v3"); E("v_lshl_add_u32 v4, v2, 4, v4"); E("s_lshl_b32 s38, s37, 8"); E("v_add_u32 v4, s38, v4")
    E("v_lshlrev_b32 v5, 10, v2"); E("v_lshl_add_u32 v5, v3, 4, v5")
    E("s_lshl_b32 s39, s33, 16"); E(f"s_add_u32 s39, s39, {hex(WS_H1)}")
    for mt in range(1,4): E(f"v_add_u32 v{5+mt}, {mt*16384}, v5")
    gemm(4,16,lambda t,d,mt: f"buffer_load_dwordx4 v[{d}:{d+3}], v{5+mt}, {S(SW)}, s39 offen offset:{t*64} sc1",12,4,8192)
    E("s_lshl_b32 s40, s33, 6"); E("s_add_u32 s40, s40, s37"); E("s_lshl_b32 s40, s40, 13")
    lv=uid("v"); le=uid("e")
    E("s_cmp_eq_u32 s36, 2"); E(f"s_cbranch_scc1 {lv}")
    E("s_lshl_b32 s41, s36, 24"); E(f"s_add_u32 s41, s41, {hex(WS_Q)}"); E("s_add_u32 s40, s40, s41")
    E("v_lshrrev_b32 v8, 2, v2"); E("v_lshlrev_b32 v8, 10, v8"); E("v_and_b32 v9, 3, v2"); E("v_lshl_add_u32 v8, v9, 8, v8"); E("v_lshl_add_u32 v8, v3, 6, v8")
    for mt in range(4):
        smov(41,(mt//2)*32*8192+(mt%2)*4096); E("s_add_u32 s41, s41, s40")
        for r in range(4):
            b=16+((mt*4+r)%4)*12
            for j in range(8): rdacc(b+j,(mt*8+j)*4+r)
            for jj in range(4): E(f"v_cvt_pk_bf16_f32 v{b+8+jj}, v{b+2*jj}, v{b+2*jj+1}")
            E(f"buffer_store_dwordx4 v[{b+8}:{b+11}], v8, {S(SW)}, s41 offen offset:{r*16} sc1")
    E(f"s_branch {le}")
    L(lv)
    E(f"s_add_u32 s40, s40, {hex(WS_VT)}")
    E("v_lshrrev_b32 v8, 2, v2"); E("v_lshlrev_b32 v8, 11, v8"); E("v_and_b32 v9, 3, v2"); E("v_lshl_add_u32 v8, v9, 6, v8"); E("v_lshl_add_u32 v8, v3, 8, v8")
    for sg in range(2):
        smov(41,sg*32*8192); E("s_add_u32 s41, s41, s40")
        for j in range(8):
            b=16+(j%4)*12
            for hh in range(2):
                for r in range(4): rdacc(b+hh*4+r,((2*sg+hh)*8+j)*4+r)
            for q in range(4): E(f"v_cvt_pk_bf16_f32 v{b+8+q}, v{b+2*q}, v{b+2*q+1}")
            E(f"buffer_store_dwordx4 v[{b+8}:{b+11}], v8, {S(SW)}, s41 offen offset:{(j%2)*1024+(j//2)*16} sc1")
    L(le)
    E(f"s_add_u32 s35, s33, {C_QKV}"); E("s_lshl_b32 s35, s35, 6"); signal_cnt(35)
```

```python
from common import *
from parts1 import *
CEXP=0x3e0293ee
def taskA():
    E(f"s_add_u32 s35, s32, {C_KV}"); E("s_lshl_b32 s35, s35, 6"); wait_cnt(35,32)
    E(f"s_lshr_b32 s36, s{SWAVE}, 1"); E(f"s_and_b32 s37, s{SWAVE}, 1")
    E("s_lshl_b32 s38, s33, 1"); E("s_add_u32 s38, s38, s36")
    E("s_lshl_b32 s39, s32, 5"); E("s_add_u32 s39, s39, s38")
    E("s_lshl_b32 s40, s39, 13"); E("s_lshl_b32 s41, s39, 11")
    Q=16;K=32;KM=64;VT=80;VM=112;SD=120;P=132;M=144;OX=148;OY=152;OF=156
    E("v_lshlrev_b32 v4, 4, v1")
    E("s_lshl_b32 s42, s37, 12"); E("s_add_u32 s42, s42, s40"); E(f"s_add_u32 s42, s42, {hex(WS_Q)}")
    for t in range(4): E(f"buffer_load_dwordx4 v[{Q+4*t}:{Q+4*t+3}], v4, {S(SW)}, s42 offen offset:{t*1024} sc1")
    E("v_and_b32 v5, 7, v2"); E("v_lshlrev_b32 v5, 8, v5"); E("v_lshl_add_u32 v5, v3, 4, v5"); E(f"s_add_u32 s43, s41, {hex(WS_KM)}")
    for t in range(4): E(f"buffer_load_dwordx4 v[{KM+4*t}:{KM+4*t+3}], v5, {S(SW)}, s43 offen offset:{t*64} sc1")
    E(f"s_add_u32 s42, s40, {hex(WS_K)}"); E("s_add_u32 s43, s42, 4096")
    for kt in range(2):
        for t in range(4): E(f"buffer_load_dwordx4 v[{K+(kt*4+t)*4}:{K+(kt*4+t)*4+3}], v4, {S(SW)}, s{42+kt} offen offset:{t*1024} sc1")
    E(f"s_add_u32 s42, s40, {hex(WS_VT)}"); E("s_add_u32 s43, s42, 4096")
    for i in range(8): E(f"buffer_load_dwordx4 v[{VT+4*i}:{VT+4*i+3}], v4, {S(SW)}, s{42+i//4} offen offset:{(i%4)*1024} sc1")
    E("v_lshlrev_b32 v6, 3, v1"); E(f"s_add_u32 s43, s41, {hex(WS_VM)}")
    for w in range(4): E(f"buffer_load_dwordx2 v[{VM+2*w}:{VM+2*w+1}], v6, {S(SW)}, s43 offen offset:{w*512} sc1")
    E("s_mov_b32 s44, -1"); E("s_mov_b32 s45, 0"); E("s_mov_b32 s46, 0"); E("s_mov_b32 s47, -1"); smov(48,CEXP)
    E("s_lshl_b32 s49, s37, 4"); E("v_lshlrev_b32 v7, 2, v3"); E("v_sub_u32 v7, v2, v7"); E("v_add_u32 v7, s49, v7")
    E("v_subrev_u32 v8, 16, v7"); E("v_mov_b32 v9, 0xf149f2ca")
    E("s_waitcnt vmcnt(20)")
    for t in range(4): E(f"v_mfma_f32_16x16x32_bf16 v[{SD}:{SD+3}], v[{KM+4*t}:{KM+4*t+3}], v[{Q+4*t}:{Q+4*t+3}], {'0' if t==0 else V(SD,4)}")
    E("s_waitcnt vmcnt(12)")
    for t in range(4):
        for kt in range(2): E(f"v_mfma_f32_16x16x32_bf16 v[{SD+4+4*kt}:{SD+7+4*kt}], v[{K+(kt*4+t)*4}:{K+(kt*4+t)*4+3}], v[{Q+4*t}:{Q+4*t+3}], {'0' if t==0 else V(SD+4+4*kt,4)}")
    E("s_nop 7")
    for kt in range(2):
        for r in range(4):
            E(f"v_cmp_le_i32 vcc, {r}, v{7+kt}"); E(f"v_cndmask_b32 v{SD+4+4*kt+r}, v9, v{SD+4+4*kt+r}, vcc")
    E(f"v_max3_f32 v{M}, v{SD+4}, v{SD+5}, v{SD+6}"); E(f"v_max3_f32 v{M+1}, v{SD+7}, v{SD+8}, v{SD+9}"); E(f"v_max3_f32 v{M}, v{SD+10}, v{SD+11}, v{M}")
    E(f"v_max3_f32 v{M+1}, v{SD}, v{SD+1}, v{M+1}"); E(f"v_max3_f32 v{M}, v{SD+2}, v{SD+3}, v{M}"); E(f"v_max_f32 v{M}, v{M}, v{M+1}")
    greduce(M,M+1,"v_max_f32")
    E(f"v_mul_f32 v{M}, s48, v{M}")
    for i in range(12): E(f"v_fma_f32 v{SD+i}, v{SD+i}, s48, -v{M}")
    for i in range(12): E(f"v_exp_f32 v{SD+i}, v{SD+i}")
    E("s_nop 0")
    for q in range(4): E(f"v_cvt_pk_bf16_f32 v{P+q}, v{SD+4+2*q}, v{SD+5+2*q}")
    E(f"v_cvt_pk_bf16_f32 v{P+4}, v{SD}, v{SD+1}"); E(f"v_cvt_pk_bf16_f32 v{P+5}, v{SD+2}, v{SD+3}")
    for q in range(2): E(f"v_cndmask_b32 v{P+6+q}, 0, v{P+4+q}, s[44:45]"); E(f"v_cndmask_b32 v{P+8+q}, 0, v{P+4+q}, s[46:47]")
    E(f"v_add_f32 v{M}, v{SD}, v{SD+1}"); E(f"v_add_f32 v{M+1}, v{SD+2}, v{SD+3}"); E(f"v_add_f32 v{M}, v{M}, v{M+1}"); E(f"v_cndmask_b32 v{M}, 0, v{M}, s[44:45]")
    E(f"v_add_f32 v{M+1}, v{SD+4}, v{SD+5}"); E(f"v_add_f32 v{M+2}, v{SD+6}, v{SD+7}"); E(f"v_add_f32 v{M+3}, v{SD+8}, v{SD+9}"); E(f"v_add_f32 v{M}, v{M}, v{SD+10}")
    E(f"v_add_f32 v{M+1}, v{M+1}, v{SD+11}"); E(f"v_add_f32 v{M+2}, v{M+2}, v{M+3}"); E(f"v_add_f32 v{M}, v{M}, v{M+1}"); E(f"v_add_f32 v{M}, v{M}, v{M+2}")
    greduce(M,M+1,"v_add_f32")
    E(f"v_rcp_f32 v{M}, v{M}")
    E("s_waitcnt vmcnt(0)")
    ACC=176
    for w in range(4):
        for b in range(2): E(f"v_mfma_f32_16x16x32_bf16 v[{ACC+(w*2+b)*4}:{ACC+(w*2+b)*4+3}], v[{VT+(w*2+b)*4}:{VT+(w*2+b)*4+3}], v[{P}:{P+3}], 0")
    for w in range(4):
        for b in range(2): E(f"v_mfma_f32_16x16x16_bf16 v[{ACC+(w*2+b)*4}:{ACC+(w*2+b)*4+3}], v[{VM+2*w}:{VM+2*w+1}], v[{P+6+2*b}:{P+7+2*b}], v[{ACC+(w*2+b)*4}:{ACC+(w*2+b)*4+3}]")
    E("s_lshl_b32 s49, s36, 13"); E("s_lshl_b32 s50, s37, 10"); E("s_add_u32 s49, s49, s50"); E("v_add_u32 v5, s49, v4")
    E("s_nop 7")
    for w in range(4):
        x=ACC+w*8; y=x+4
        for r in range(4): E(f"v_mul_f32 v{x+r}, v{x+r}, v{M}"); E(f"v_mul_f32 v{y+r}, v{y+r}, v{M}")
        for r in range(4): E(f"v_cvt_pk_bf16_f32 v{OF+4*w+r}, v{x+r}, v{y+r}")
        E(f"ds_write_b128 v5, v[{OF+4*w}:{OF+4*w+3}] offset:{w*2048}")
    E("s_waitcnt lgkmcnt(0)"); E("s_barrier")
    for i in range(16): E(f"ds_read_b128 v[{AB+4*i}:{AB+4*i+3}], v4 offset:{i*1024}")
    srd(12,I_WO)
    E("v_lshlrev_b32 v10, 13, v3"); E("v_lshl_add_u32 v10, v2, 4, v10"); E("s_lshl_b32 s49, s33, 18"); E(f"s_lshl_b32 s50, s{SWAVE}, 8"); E("s_add_u32 s49, s49, s50"); E("v_add_u32 v10, s49, v10")
    E("s_waitcnt lgkmcnt(0)")
    gemm(2,8,None,12,10,1024)
    E("v_lshlrev_b32 v8, 13, v3"); E("v_lshl_add_u32 v8, v2, 5, v8"); E(f"s_lshl_b32 s50, s{SWAVE}, 9"); E("v_add_u32 v8, s50, v8")
    E("s_lshl_b32 s49, s32, 4"); E("s_add_u32 s49, s49, s33"); E("s_lshl_b32 s49, s49, 16"); E(f"s_add_u32 s49, s49, {hex(WS_PO)}")
    for mt in range(2):
        for r in range(4):
            b=16+((mt*4+r)%4)*8
            for j in range(8): rdacc(b+j,(mt*8+j)*4+r)
            if mt==1 and r==0: E("s_add_u32 s49, s49, 0x7000")
            if r==2: E("s_add_u32 s49, s49, 0x1000")
            E(f"buffer_store_dwordx4 v[{b}:{b+3}], v8, {S(SW)}, s49 offen offset:{(r%2)*2048} sc1"); E(f"buffer_store_dwordx4 v[{b+4}:{b+7}], v8, {S(SW)}, s49 offen offset:{(r%2)*2048+16} sc1")
    E(f"s_add_u32 s35, s32, {C_A}"); E("s_lshl_b32 s35, s35, 6"); signal_cnt(35)

def taskB():
    srd(16,I_X)
    E("v_lshlrev_b32 v4, 5, v1"); E("v_lshlrev_b32 v5, 4, v1")
    E("s_lshl_b32 s36, s33, 2"); E(f"s_add_u32 s36, s36, s{SWAVE}")
    E("s_lshl_b32 s37, s32, 5"); E("s_add_u32 s37, s37, s36"); E("s_lshl_b32 s37, s37, 10")
    load_mod8(16,2,4); load_mod8(24,4,4); load_mod8(32,3,4)
    E(f"buffer_load_dwordx4 v[40:43], v5, {S(16)}, s37 offen")
    E(f"s_add_u32 s35, s32, {C_A}"); E("s_lshl_b32 s35, s35, 6"); wait_cnt(35,16)
    E("s_lshl_b32 s38, s32, 20"); E("s_lshl_b32 s39, s36, 11"); E("s_add_u32 s38, s38, s39"); E(f"s_add_u32 s38, s38, {hex(WS_PO)}")
    R=64
    for p in range(16):
        E(f"buffer_load_dwordx4 v[{R+8*p}:{R+8*p+3}], v4, {S(SW)}, s38 offen sc1"); E(f"buffer_load_dwordx4 v[{R+8*p+4}:{R+8*p+7}], v4, {S(SW)}, s38 offen offset:16 sc1")
        E("s_add_u32 s38, s38, 0x10000")
    E("s_waitcnt vmcnt(32)"); one_plus(24); unpack8(40,48)
    for p in range(1,16):
        E(f"s_waitcnt vmcnt({30-2*p})")
        for j in range(8): E(f"v_add_f32 v{R+j}, v{R+j}, v{R+8*p+j}")
    for j in range(8):
        cvt_bf16_round_f32(R+j,None); E(f"v_mul_f32 v{R+j}, v{R+j}, v{16+j}"); cvt_bf16_round_f32(R+j,None); E(f"v_add_f32 v{48+j}, v{48+j}, v{R+j}")
    for q in range(4): E(f"v_cvt_pk_bf16_f32 v{60+q}, v{48+2*q}, v{48+2*q+1}")
    E(f"s_add_u32 s38, s37, {hex(WS_X1)}"); E(f"buffer_store_dwordx4 v[60:63], v5, {S(SW)}, s38 offen sc1")
    unpack8(60,48); ln_row(48,24,32,56,44)
    E(f"s_add_u32 s38, s37, {hex(WS_H2)}"); E(f"buffer_store_dwordx4 v[44:47], v5, {S(SW)}, s38 offen sc1")
    E(f"s_add_u32 s35, s32, {C_B}"); E("s_lshl_b32 s35, s35, 6"); signal_cnt(35)

def red_write():
    E(f"s_lshl_b32 s49, s{SWAVE}, 14"); E("v_lshlrev_b32 v8, 4, v1"); E("v_add_u32 v9, s49, v8")
    for mt in range(2):
        for r in range(4):
            b=16+((mt*4+r)%4)*8
            for j in range(8): rdacc(b+j,(mt*8+j)*4+r)
            E(f"ds_write_b128 v9, v[{b}:{b+3}] offset:{(mt*4+r)*2048}"); E(f"ds_write_b128 v9, v[{b+4}:{b+7}] offset:{(mt*4+r)*2048+1024}")
    E("s_waitcnt lgkmcnt(0)"); E("s_barrier")
    E(f"s_lshl_b32 s49, s{SWAVE}, 12"); E("v_add_u32 v9, s49, v8"); E("v_add_u32 v11, 0x8000, v9")
    for rr in range(2):
        for src in range(4):
            for hf in range(2): E(f"ds_read_b128 v[{64+(rr*4+src)*8+hf*4}:{64+(rr*4+src)*8+hf*4+3}], v{9 if src<2 else 11} offset:{(src%2)*16384+rr*2048+hf*1024}")
def fin_row_sreg():
    E(f"s_lshr_b32 s40, s{SWAVE}, 1"); E("s_lshl_b32 s40, s40, 4"); E(f"s_and_b32 s41, s{SWAVE}, 1"); E("s_lshl_b32 s41, s41, 1"); E("s_add_u32 s40, s40, s41")
    E("s_lshl_b32 s41, s32, 5"); E("s_add_u32 s40, s40, s41")
def taskC():
    l=uid("cg"); srd(12,I_WG); E(f"s_cmp_lt_u32 s{SWAVE}, 2"); E(f"s_cbranch_scc1 {l}"); srd(12,I_WU); L(l)
    E(f"s_and_b32 s36, s{SWAVE}, 1")
    E("v_mul_u32_u24 v10, 22016, v3"); E("v_lshl_add_u32 v10, v2, 4, v10"); E(f"s_mul_i32 s37, s36, {256*2752}"); E("s_lshl_b32 s38, s33, 8"); E("s_add_u32 s37, s37, s38"); E("v_add_u32 v10, s37, v10")
    E("v_lshlrev_b32 v5, 10, v2"); E("v_lshl_add_u32 v5, v3, 4, v5"); E("v_add_u32 v6, 16384, v5")
    E("s_lshl_b32 s39, s32, 15"); E("s_lshl_b32 s38, s36, 9"); E("s_add_u32 s39, s39, s38"); E(f"s_add_u32 s39, s39, {hex(WS_H2)}")
    E(f"s_add_u32 s35, s32, {C_B}"); E("s_lshl_b32 s35, s35, 6"); wait_cnt(35,8)
    gemm(2,8,lambda t,d,mt: f"buffer_load_dwordx4 v[{d}:{d+3}], v{5+mt}, {S(SW)}, s39 offen offset:{t*64} sc1",12,10,2752)
    red_write(); fin_row_sreg()
    E(f"v_mul_u32_u24 v12, {4*2816}, v3"); E("v_lshl_add_u32 v12, v2, 4, v12"); E(f"s_mul_i32 s41, s40, 2816"); E("s_lshl_b32 s42, s33, 8"); E("s_add_u32 s41, s41, s42"); E(f"s_add_u32 s41, s41, {hex(WS_HF)}")
    E("s_lshl_b32 s42, s33, 7"); E("v_lshl_add_u32 v13, v2, 3, s42"); E("v_cmp_gt_u32 vcc, 0x560, v13"); E("s_mov_b64 s[44:45], vcc")
    smov(46,0x3d372713); smov(47,0xc0135761)
    E("s_waitcnt lgkmcnt(0)")
    for rr in range(2):
        b=64+rr*32
        for j in range(8):
            g=b+j; u=b+16+j; t=16+2*j
            E(f"v_add_f32 v{g}, v{g}, v{b+8+j}"); E(f"v_add_f32 v{u}, v{u}, v{b+24+j}"); cvt_bf16_round_f32(g,None); cvt_bf16_round_f32(u,None)
            E(f"v_mul_f32 v{t}, v{g}, v{g}"); E(f"v_fma_f32 v{t}, v{t}, s46, 1.0"); E(f"v_mul_f32 v{t}, v{t}, v{g}"); E(f"v_mul_f32 v{t}, s47, v{t}")
        for j in range(8): E(f"v_exp_f32 v{16+2*j}, v{16+2*j}")
        for j in range(8): E(f"v_add_f32 v{16+2*j}, 1.0, v{16+2*j}")
        for j in range(8): E(f"v_rcp_f32 v{16+2*j}, v{16+2*j}")
        E("s_nop 0")
        for j in range(8):
            g=b+j; u=b+16+j
            E(f"v_mul_f32 v{g}, v{g}, v{16+2*j}"); cvt_bf16_round_f32(g,None); E(f"v_mul_f32 v{g}, v{g}, v{u}"); E(f"v_cndmask_b32 v{g}, 0, v{g}, s[44:45]")
        for q in range(4): E(f"v_cvt_pk_bf16_f32 v{32+rr*4+q}, v{b+2*q}, v{b+2*q+1}")
        E(f"buffer_store_dwordx4 v[{32+rr*4}:{35+rr*4}], v12, {S(SW)}, s41 offen offset:{rr*2816} sc1")
    E(f"s_add_u32 s35, s32, {C_C}"); E("s_lshl_b32 s35, s35, 6"); signal_cnt(35)
def taskD():
    srd(12,I_WD); srd(16,I_OUT)
    E("v_lshlrev_b32 v10, 13, v3"); E("v_lshl_add_u32 v10, v2, 4, v10"); E(f"s_mul_i32 s37, s{SWAVE}, {352*1024}"); E("s_lshl_b32 s38, s33, 8"); E("s_add_u32 s37, s37, s38"); E("v_add_u32 v10, s37, v10")
    E("v_mul_u32_u24 v5, 2816, v2"); E("v_lshl_add_u32 v5, v3, 4, v5"); E(f"v_add_u32 v6, {16*2816}, v5")
    E(f"s_mul_i32 s39, s32, {32*2816}"); E(f"s_mul_i32 s38, s{SWAVE}, 704"); E("s_add_u32 s39, s39, s38"); E(f"s_add_u32 s39, s39, {hex(WS_HF)}")
    E(f"s_add_u32 s35, s32, {C_C}"); E("s_lshl_b32 s35, s35, 6"); wait_cnt(35,11)
    gemm(2,11,lambda t,d,mt: f"buffer_load_dwordx4 v[{d}:{d+3}], v{5+mt}, {S(SW)}, s39 offen offset:{t*64} sc1",12,10,1024)
    fin_row_sreg()
    E("v_lshlrev_b32 v12, 12, v3"); E("v_lshl_add_u32 v12, v2, 4, v12"); E("s_lshl_b32 s41, s40, 10"); E("s_lshl_b32 s42, s33, 8"); E("s_add_u32 s41, s41, s42")
    E(f"s_add_u32 s43, s41, {hex(WS_X1)}")
    for rr in range(2): E(f"buffer_load_dwordx4 v[{48+4*rr}:{51+4*rr}], v12, {S(SW)}, s43 offen offset:{rr*1024} sc1")
    E("v_lshlrev_b32 v13, 5, v2"); E("s_lshl_b32 s42, s33, 9"); E(f"s_add_u32 s42, s42, {hex(WS_MOD+5*2048)}")
    E(f"buffer_load_dwordx4 v[56:59], v13, {S(SW)}, s42 offen"); E(f"buffer_load_dwordx4 v[60:63], v13, {S(SW)}, s42 offen offset:16")
    red_write()
    E("s_waitcnt vmcnt(0) lgkmcnt(0)")
    for rr in range(2):
        b=64+rr*32; unpack8(48+4*rr,16)
        for j in range(8):
            g=b+j
            E(f"v_add_f32 v{g}, v{g}, v{b+8+j}"); E(f"v_add_f32 v{b+16+j}, v{b+16+j}, v{b+24+j}"); E(f"v_add_f32 v{g}, v{g}, v{b+16+j}")
            cvt_bf16_round_f32(g,None); E(f"v_mul_f32 v{g}, v{g}, v{56+j}"); cvt_bf16_round_f32(g,None); E(f"v_add_f32 v{g}, v{g}, v{16+j}")
        for q in range(4): E(f"v_cvt_pk_bf16_f32 v{32+rr*4+q}, v{b+2*q}, v{b+2*q+1}")
        E(f"buffer_store_dwordx4 v[{32+rr*4}:{35+rr*4}], v12, {S(16)}, s41 offen offset:{rr*1024}")
    E("s_waitcnt vmcnt(0) lgkmcnt(0)"); E("s_barrier")
```

```python
import sys, common
from common import *
import parts1, chain, phase3
mode=sys.argv[1]; dst=sys.argv[2]
hdr=open('cdna_kernels/'+NAME+'.s.ref').read().split('\n')
lines=[l for l in hdr if l.startswith(';') and not l.startswith('; @launch') and not l.startswith('; Override') and not l.startswith('; grid=ceil')]
lines=lines[:18]
LDSW=65536; LDSM=163840
def simple(name,ntask,fn,vg=256,split=None):
    khead(name); E(f"s_cmp_ge_u32 s2, {ntask}"); E(f"s_cbranch_scc1 L_{name}_end")
    load_ptrs(); srd(SW,I_WS); lane_setup(); E("s_mov_b32 s61, 0"); fn()
    L(f"L_{name}_end"); E("s_endpgm"); out.append(kd(name,512,256))
def divmod_s(n):
    E(f"s_mul_hi_u32 s32, s2, {hex((2**32+n-1)//n)}"); E(f"s_mul_i32 s33, s32, {n}"); E("s_sub_u32 s33, s2, s33")
def roles(lbl_chain_fast,lbl_chain_slow,lbl_worker):
    srd(12,I_DBG)
    E("s_getreg_b32 s6, hwreg(HW_REG_XCC_ID)"); E("s_and_b32 s6, s6, 15")
    lw=uid("rw"); l1=uid("r1"); l2=uid("r2")
    E(f"s_cmp_lg_u32 s{SWAVE}, 0"); E(f"s_cbranch_scc1 {lw}")
    E("v_mov_b32 v5, 0"); E("v_mov_b32 v6, 1"); E("s_mov_b64 exec, 1")
    E("s_cmp_lg_u32 s6, 0"); E(f"s_cbranch_scc1 {l1}")
    E(f"buffer_atomic_add v6, v5, {S(12)}, 0 offen sc0 sc1"); E("s_waitcnt vmcnt(0)"); E("v_readfirstlane_b32 s7, v6"); E("s_nop 3")
    E("s_cmp_lt_u32 s7, 32"); E(f"s_cbranch_scc0 {l1}")
    E("s_or_b32 s7, s7, 0x1000"); E(f"s_branch {l2}")
    L(l1)
    E("v_mov_b32 v6, 1"); E(f"buffer_atomic_add v6, v5, {S(12)}, 0 offen offset:64 sc0 sc1"); E("s_waitcnt vmcnt(0)"); E("v_readfirstlane_b32 s7, v6"); E("s_nop 3")
    E("s_cmp_lt_u32 s7, 224"); E(f"s_cbranch_scc1 {l2}")
    E("s_sub_u32 s7, 255, s7"); E("s_or_b32 s7, s7, 0x1000")
    L(l2)
    E("v_mov_b32 v6, s7"); E("ds_write_b32 v5, v6"); E("s_mov_b64 exec, -1")
    L(lw)
    E("s_waitcnt lgkmcnt(0)"); E("s_barrier"); E("v_mov_b32 v5, 0"); E("ds_read_b32 v6, v5"); E("s_waitcnt lgkmcnt(0)"); E("v_readfirstlane_b32 s5, v6"); E("s_nop 3"); E("s_barrier")
    E("s_bitcmp1_b32 s5, 12"); E(f"s_cbranch_scc0 {lbl_worker}")
    E("s_and_b32 s5, s5, 63")
def mode_decide(lbl_fast,lbl_slow):
    srd(12,I_DBG)
    l=uid("md"); E("v_mov_b32 v120, 0")
    L(l)
    E(f"buffer_load_dword v121, v120, {S(12)}, 0 offen sc1"); E(f"buffer_load_dword v122, v120, {S(12)}, 0 offen offset:64 sc1"); E("s_waitcnt vmcnt(0)")
    E("v_readfirstlane_b32 s6, v121"); E("v_readfirstlane_b32 s7, v122"); E("s_nop 3")
    E("s_cmp_ge_u32 s7, 225"); E(f"s_cbranch_scc1 {lbl_slow}")
    E("s_cmp_ge_u32 s6, 32"); E(f"s_cbranch_scc1 {lbl_fast}")
    E("s_add_u32 s61, s61, 1"); E("s_cmp_gt_u32 s61, 0x80000"); E(f"s_cbranch_scc1 {lbl_slow}"); E("s_sleep 1"); E(f"s_branch {l}")
def worker():
    l=uid("p1"); E("s_cmp_ge_u32 s5, 128"); E(f"s_cbranch_scc1 {l}"); parts1.ln1_task(); L(l)
    t=uid("p2"); d=uid("p2d"); E("s_mov_b32 s62, s5")
    L(t); E("s_cmp_ge_u32 s62, 768"); E(f"s_cbranch_scc1 {d}"); E("s_mov_b32 s32, s62"); parts1.qkv_task(); E("s_add_u32 s62, s62, 224"); E(f"s_branch {t}")
    L(d)
    t=uid("p3"); d=uid("p3d"); nx=uid("p3n"); lb=uid("tb"); lc=uid("tc"); ld=uid("td")
    E("s_mov_b32 s62, s5")
    L(t); E(f"s_cmp_ge_u32 s62, {67*39}"); E(f"s_cbranch_scc1 {d}")
    E(f"s_mul_hi_u32 s32, s62, {hex((2**32+38)//39)}"); E("s_mul_i32 s33, s32, 39"); E("s_sub_u32 s33, s62, s33")
    E("s_cmp_lt_u32 s33, 4"); E(f"s_cbranch_scc1 {ld}")
    E("s_cmp_lt_u32 s33, 15"); E(f"s_cbranch_scc1 {lc}")
    E("s_cmp_lt_u32 s33, 23"); E(f"s_cbranch_scc1 {lb}")
    E("s_sub_u32 s33, s33, 23"); E("s_cmp_ge_u32 s32, 64"); E(f"s_cbranch_scc1 {nx}"); phase3.taskA(); E(f"s_branch {nx}")
    L(lb); E("s_sub_u32 s33, s33, 15"); E("s_sub_u32 s32, s32, 1"); E("s_cmp_ge_u32 s32, 64"); E(f"s_cbranch_scc1 {nx}"); phase3.taskB(); E(f"s_branch {nx}")
    L(lc); E("s_sub_u32 s33, s33, 4"); E("s_sub_u32 s32, s32, 2"); E("s_cmp_ge_u32 s32, 64"); E(f"s_cbranch_scc1 {nx}"); phase3.taskC(); E(f"s_branch {nx}")
    L(ld); E("s_sub_u32 s32, s32, 3"); E("s_cmp_ge_u32 s32, 64"); E(f"s_cbranch_scc1 {nx}"); phase3.taskD()
    L(nx); E("s_add_u32 s62, s62, 224"); E(f"s_branch {t}")
    L(d)
def main(name,workers):
    khead(name); end=f"L_{name}_end"
    E("s_cmp_ge_u32 s2, 256"); E(f"s_cbranch_scc1 {end}")
    load_ptrs(); srd(SW,I_WS); lane_setup(); E("s_mov_b32 s61, 0")
    lw=uid("worker"); lf=uid("fast"); ls=uid("slow")
    roles(lf,ls,lw)
    CFG["wv"]=120
    chain.chain_prologue()
    mode_decide(lf,ls)
    L(lf); chain.chain_loop(True); E("s_endpgm")
    L(ls); chain.chain_loop(False); E("s_endpgm")
    CFG["wv"]=250
    L(lw)
    if workers: worker()
    L(end); E("s_endpgm"); out.append(kd(name,512,256))
launch=[]
parts1.k0(); launch.append(("init_kernel",256,2048))
if mode=="multi":
    CFG["sync"]=False
    def f(): E("s_mov_b32 s5, s2"); parts1.ln1_task()
    simple("ln1_kernel",128,f); launch.append(("ln1_kernel",128,0))
    def f(): E("s_mov_b32 s32, s2"); parts1.qkv_task()
    simple("qkv_kernel",768,f); launch.append(("qkv_kernel",768,0))
    main("chain_kernel",False); launch.append(("chain_kernel",256,LDSM))
    for nm,n,fn,lds in (("a",16,phase3.taskA,16384),("b",8,phase3.taskB,0),("c",11,phase3.taskC,LDSW),("d",4,phase3.taskD,LDSW)):
        def f(n=n,fn=fn): divmod_s(n); fn()
        simple(nm+"_kernel",64*n,f); launch.append((nm+"_kernel",64*n,lds))
else:
    main("main_kernel",True); launch.append(("main_kernel",256,LDSM))
txt="\n".join(lines)+"\n"+"".join(f"; @launch kernel={k} grid=({g},1,1) block=(256,1,1) lds={l}\n" for k,g,l in launch)
txt+='.amdgcn_target "amdgcn-amd-amdhsa--gfx950"\n.text\n'+"\n".join(out)+"\n"
open(dst,'w').write(txt)
print(" ".join(f"{k}:{g}:256:{l}" for k,g,l in launch))
```

```python
from common import *
L_WV=0; L_KX=131072; L_MEM=139264; L_QB=147456; L_KB=149760; L_OB=152064; LDS_CHAIN=154368
AF=16; QX,QY,KX_,KY,VX,VY=48,52,56,60,64,68; VT=72; RING=80; NR=5; SD=96; WO=128
IDX=4; VMW=5; VPOLL=6; VFR=7; VQW=8; VQR=9; VPS=10; VRD=11; VMS=12; VOW=13; VVT=14; VWV=15; T0=120
CEXP=0x3e0293ee
def chain_prologue():
    C("chain prologue: lane consts")
    E("v_cmp_gt_u32 vcc, 8, v2"); E(f"v_mov_b32 v{T0}, 0xeeee"); E(f"v_mov_b32 v{T0+1}, 0x4444"); E(f"v_cndmask_b32 v{IDX}, v{T0}, v{T0+1}, vcc")
    E("s_mov_b32 s40, -1"); E("s_mov_b32 s41, 0"); E("s_mov_b32 s42, 0"); E("s_mov_b32 s43, -1")
    smov(21,0x05040100); smov(22,0x07060302)
    E("v_lshrrev_b32 v120, 1, v3"); E("v_and_b32 v121, 1, v3")
    E("v_lshlrev_b32 v122, 17, v120"); E("v_lshl_add_u32 v122, v121, 15, v122")
    E("v_lshl_add_u32 v122, v2, 2, v122"); E("s_lshl_b32 s32, s5, 8"); E(f"s_lshl_b32 s33, s{SWAVE}, 6"); E("s_add_u32 s32, s32, s33"); E("v_add_u32 v122, s32, v122")
    E(f"s_lshl_b32 s33, s{SWAVE}, 15"); E(f"v_lshlrev_b32 v{VWV}, 4, v1"); E(f"v_add_u32 v{VWV}, s33, v{VWV}")
    batches=[]
    for mi,inp in ((0,I_WQ),(1,I_WK),(2,I_WV)):
        for t in range(8): batches.append((mi,inp,t))
    TB=[16,32,48,64]
    def issue(bi):
        mi,inp,t=batches[bi]
        if t==0: srd(12 if mi%2==0 else 16,inp)
        s=12 if mi%2==0 else 16
        for q in range(8):
            for e0 in range(2):
                row=64*t+32*(q//4)+8*(q%2)+2*((q%4)//2)+e0
                smov(34,row*8192); E(f"buffer_load_dword v{TB[bi%4]+2*q+e0}, v122, {S(s)}, s34 offen")
    def consume(bi):
        mi,inp,t=batches[bi]; b=TB[bi%4]
        for beta in range(2):
            for q in range(8): E(f"v_perm_b32 v{80+beta*8+q}, v{b+2*q+1}, v{b+2*q}, s{21+beta}")
        if mi<2:
            for beta in range(2):
                for q in range(8): E(f"v_accvgpr_write_b32 a{mi*128+(t*2+beta)*8+q}, v{80+beta*8+q}")
        else:
            for beta in range(2):
                for hf in range(2): E(f"ds_write_b128 v{VWV}, v[{80+beta*8+hf*4}:{80+beta*8+hf*4+3}] offset:{(t*2+beta)*2048+hf*1024}")
            E("s_nop 1")
    n=len(batches)
    for bi in range(3): issue(bi)
    for bi in range(n):
        if bi+3<n: issue(bi+3)
        E(f"s_waitcnt vmcnt({16*min(3,n-1-bi)})"); consume(bi)
    srd(12,I_WO)
    E("v_lshlrev_b32 v122, 13, v120"); E("v_lshl_add_u32 v122, v121, 12, v122"); E("v_lshl_add_u32 v122, v2, 2, v122")
    E("s_lshl_b32 s32, s5, 17"); E(f"s_lshl_b32 s33, s{SWAVE}, 8"); E("s_add_u32 s32, s32, s33"); E("v_add_u32 v122, s32, v122")
    fr=[(p,t) for p in range(4) for t in range(4)]
    TB2=[16,24,32,40,48,56,64,72]
    def issue2(bi):
        p,t=fr[bi]
        for m in range(4):
            for e0 in range(2):
                smov(34,(32*t+16*(m//2)+2*(m%2)+e0)*1024+p*64); E(f"buffer_load_dword v{TB2[bi%8]+2*m+e0}, v122, {S(12)}, s34 offen")
    for bi in range(7): issue2(bi)
    for bi in range(16):
        if bi+7<16: issue2(bi+7)
        E(f"s_waitcnt vmcnt({8*min(7,15-bi)})"); p,t=fr[bi]; b=TB2[bi%8]
        for m in range(4):
            for beta in range(2): E(f"v_perm_b32 v{WO+(p*4+t)*8+2*m+beta}, v{b+2*m+1}, v{b+2*m}, s{21+beta}")
    C("address constants")
    E(f"s_lshl_b32 s33, s{SWAVE}, 7"); E("v_add_u32 v120, s33, v1"); E("v_lshrrev_b32 v121, 2, v120")
    E("v_and_b32 v122, 3, v120"); E("v_lshlrev_b32 v122, 5, v122")
    E("v_lshrrev_b32 v123, 4, v121"); E("v_lshl_add_u32 v122, v123, 10, v122")
    E("v_bfe_u32 v123, v121, 2, 2"); E("v_lshl_add_u32 v122, v123, 8, v122")
    E("v_bfe_u32 v123, v121, 1, 1"); E("v_lshl_add_u32 v122, v123, 7, v122")
    E("v_and_b32 v123, 1, v121"); E("v_lshl_add_u32 v122, v123, 3, v122"); E(f"v_add_u32 v{VMW}, {L_MEM}, v122")
    E(f"s_lshl_b32 s33, s{SWAVE}, 11"); E(f"v_lshlrev_b32 v{VPOLL}, 4, v1"); E(f"v_add_u32 v{VPOLL}, s33, v{VPOLL}")
    E(f"v_lshlrev_b32 v{VFR}, 4, v1"); E(f"v_add_u32 v0, {L_KX}, v{VFR}")
    E("v_and_b32 v120, 1, v3"); E("v_mul_u32_u24 v120, 1088, v120"); E("v_lshl_add_u32 v120, v2, 2, v120"); E("v_lshrrev_b32 v121, 1, v3"); E("v_lshl_add_u32 v120, v121, 1, v120")
    E(f"s_lshl_b32 s33, s{SWAVE}, 6"); E(f"s_add_u32 s33, s33, {L_QB}"); E(f"v_add_u32 v{VQW}, s33, v120")
    E("v_and_b32 v120, 7, v2"); E("v_mul_u32_u24 v120, 272, v120"); E("v_lshl_add_u32 v120, v3, 4, v120"); E(f"v_add_u32 v{VQR}, {L_QB}, v120")
    E(f"s_lshl_b32 s33, s{SWAVE}, 6"); E(f"s_add_u32 s33, s33, {L_OB}"); E(f"v_add_u32 v{VOW}, s33, v120")
    E("v_lshrrev_b32 v120, 1, v2"); E("v_lshlrev_b32 v120, 12, v120"); E("v_and_b32 v121, 1, v2"); E("v_lshl_add_u32 v120, v121, 6, v120")
    E("v_lshrrev_b32 v121, 1, v3"); E("v_lshl_add_u32 v120, v121, 5, v120"); E("v_and_b32 v121, 1, v3"); E("v_lshl_add_u32 v120, v121, 4, v120")
    E(f"s_lshl_b32 s33, s{SWAVE}, 17"); E("s_lshl_b32 s34, s5, 7"); E("s_add_u32 s33, s33, s34"); E(f"v_add_u32 v{VPS}, s33, v120")
    E(f"s_lshl_b32 s33, s5, 2"); E(f"s_add_u32 s33, s33, s{SWAVE}"); E("s_lshl_b32 s34, s33, 12"); E(f"v_add_u32 v{VRD}, s34, v{VFR}")
    E("v_and_b32 v120, 1, v1"); E("v_lshlrev_b32 v120, 5, v120"); E("v_bfe_u32 v121, v1, 4, 1"); E("v_lshl_add_u32 v120, v121, 4, v120")
    E("v_bfe_u32 v121, v1, 5, 1"); E("v_lshl_add_u32 v120, v121, 3, v120"); E("v_bfe_u32 v121, v1, 2, 1"); E("v_lshl_add_u32 v120, v121, 2, v120")
    E("s_lshl_b32 s34, s33, 6"); E(f"v_add_u32 v{VMS}, s34, v120")
    E("s_mov_b32 s44, 0x00330033"); E("s_mov_b32 s45, 0x00330033")
    E(f"v_mov_b32 v{VVT}, v{VPOLL}")
    smov(46,CEXP)
def prefetch_k(sreg_seg):
    E(f"s_lshl_b32 s34, s{sreg_seg}, 5"); E("s_add_u32 s34, s34, s5"); E("s_lshl_b32 s34, s34, 13")
    E(f"s_add_u32 s35, s34, {hex(WS_K)}"); E(f"s_add_u32 s57, s34, {hex(WS_VT)}")
    E(f"s_lshl_b32 s37, s{SWAVE}, 11"); E(f"s_add_u32 s37, s37, {L_KX}"); E("s_mov_b32 m0, s37"); E("s_nop 0")
    E(f"buffer_load_dwordx4 v{VPOLL}, {S(SW)}, s35 offen sc1 lds")
    E(f"buffer_load_dwordx4 v{VPOLL}, {S(SW)}, s35 offen offset:1024 sc1 lds")
def prefetch_v():
    E(f"buffer_load_dwordx4 v[{VT}:{VT+3}], v{VVT}, {S(SW)}, s57 offen sc1"); E(f"buffer_load_dwordx4 v[{VT+4}:{VT+7}], v{VVT}, {S(SW)}, s57 offen offset:1024 sc1")
def ringload(f):
    b=RING+(f%NR)*8
    return [f"ds_read_b128 v[{b}:{b+3}], v{VWV} offset:{f*2048}", f"ds_read_b128 v[{b+4}:{b+7}], v{VWV} offset:{f*2048+1024}"]
def spin_guard(lbl_fail):
    E("s_add_u32 s61, s61, 1"); E("s_cmp_gt_u32 s61, 0x40000"); E(f"s_cbranch_scc1 {lbl_fail}")
import os
PROF=os.environ.get("PROF")=="1"
WS_PROF=0xA0000
def TS(i):
    if PROF: E(f"s_memtime s[{64+2*i}:{65+2*i}]")
def TSflush():
    if not PROF: return
    E("s_waitcnt lgkmcnt(0)")
    for i in range(8): E(f"v_mov_b32 v{104+i}, s{64+2*i}")
    E(f"s_lshl_b32 s34, s5, 2"); E(f"s_add_u32 s34, s34, s{SWAVE}"); E("s_lshl_b32 s34, s34, 6"); E("s_add_u32 s34, s34, s50"); E("s_lshl_b32 s34, s34, 5"); E(f"s_add_u32 s34, s34, {hex(WS_PROF)}")
    E("v_mov_b32 v112, 0"); E("s_mov_b64 exec, 1")
    E(f"buffer_store_dwordx4 v[104:107], v112, {S(SW)}, s34 offen"); E(f"buffer_store_dwordx4 v[108:111], v112, {S(SW)}, s34 offen offset:16"); E("s_mov_b64 exec, -1")
def chain_loop(fast):
    st="" if fast else " sc1"
    top=uid("ctop"); fin=uid("cfin"); done=uid("cdone")
    E("s_mov_b32 s50, 0")
    E(f"s_mov_b32 s35, {C_QKV*64}"); wait_cnt(35,16); prefetch_k(50); prefetch_v(); RT(2)
    L(top)
    TS(0)
    E("s_add_u32 s54, s50, 1"); E("s_lshr_b32 s58, s54, 2"); E(f"s_add_u32 s58, s58, {C_QKV}"); E("s_lshl_b32 s58, s58, 6")
    E(f"buffer_load_dword v123, off, {S(SW)}, s58 sc1")
    for f in range(NR):
        for x in ringload(f): E(x)
    for r in range(24): E(f"v_mov_b32 v{QX+r}, 0")
    E("s_lshl_b32 s51, s50, 13"); E(f"s_add_u32 s51, s51, {hex(WS_MEM)}")
    pl=uid("pm"); pd=uid("pmd")
    L(pl)
    E(f"buffer_load_dwordx4 v[16:19], v{VPOLL}, {S(SW)}, s51 offen sc1"); E(f"buffer_load_dwordx4 v[20:23], v{VPOLL}, {S(SW)}, s51 offen offset:1024 sc1")
    spin_guard(pd)
    E("s_waitcnt vmcnt(0)")
    E("v_max3_u32 v24, v16, v17, v18"); E("v_max3_u32 v25, v19, v20, v21"); E("v_max3_u32 v24, v22, v23, v24"); E("v_max_u32 v24, v24, v25")
    E("v_cmp_eq_u32 vcc, -1, v24"); E(f"s_cbranch_vccnz {pl}")
    L(pd)
    TS(1)
    E(f"ds_write_b64 v{VMW}, v[16:17]"); E(f"ds_write_b64 v{VMW}, v[18:19] offset:16"); E(f"ds_write_b64 v{VMW}, v[20:21] offset:1024"); E(f"ds_write_b64 v{VMW}, v[22:23] offset:1040")
    E("s_waitcnt lgkmcnt(0)"); E("s_barrier")
    for t in range(8): E(f"ds_read_b128 v[{AF+4*t}:{AF+4*t+3}], v0 offset:{L_MEM-L_KX+t*1024}")
    l=uid("sk"); E("s_cmp_eq_u32 s50, 0"); E(f"s_cbranch_scc1 {l}"); E(f"s_cmp_lg_u32 s{SWAVE}, 0"); E(f"s_cbranch_scc1 {l}")
    E(f"s_add_u32 s34, s50, {C_KV-1}"); E("s_lshl_b32 s34, s34, 6"); E("v_mov_b32 v120, 0"); E("v_mov_b32 v121, 1"); E("s_mov_b64 exec, 1")
    E(f"buffer_atomic_add v121, v120, {S(SW)}, s34 offen sc1"); E("s_mov_b64 exec, -1"); L(l)
    lds_out=8
    issued=[("AF",t) for t in range(8)]
    def waitfor(key):
        if key not in issued: return
        idx=len(issued)-1-issued[::-1].index(key); n=len(issued)-1-idx
        E(f"s_waitcnt lgkmcnt({min(n,15)})"); del issued[:idx+1]
    nxt=NR
    for t in range(8):
        waitfor(("AF",t))
        for (acc,mi) in ((QX,0),(KX_,1)):
            for b in range(2):
                E(f"v_smfmac_f32_16x16x64_bf16 v[{acc+4*b}:{acc+4*b+3}], v[{AF+4*t}:{AF+4*t+3}], a[{mi*128+(t*2+b)*8}:{mi*128+(t*2+b)*8+7}], v{IDX}")
        for b in range(2):
            f=t*2+b; waitfor(("R",f)); rb=RING+(f%NR)*8
            E(f"v_smfmac_f32_16x16x64_bf16 v[{VX+4*b}:{VX+4*b+3}], v[{AF+4*t}:{AF+4*t+3}], v[{rb}:{rb+7}], v{IDX}")
            if nxt<16:
                for x in ringload(nxt): E(x)
                issued.append(("Rh",nxt)); issued.append(("R",nxt)); nxt+=1
    TS(2)
    for i in range(8): E(f"ds_read_b128 v[{AF+4*i}:{AF+4*i+3}], v0 offset:{i*1024}")
    E("s_nop 7")
    for (x,y) in ((QX,QY),(KX_,KY),(VX,VY)):
        for r in range(4): E(f"v_permlane32_swap_b32 v{x+r}, v{y+r}")
        E("s_nop 0")
        for r in range(4): E(f"v_add_f32 v{x+r}, v{x+r}, v{y+r}")
        E(f"v_cvt_pk_bf16_f32 v{y}, v{x}, v{x+1}"); E(f"v_cvt_pk_bf16_f32 v{y+1}, v{x+2}, v{x+3}")
        if x!=VX:
            off=0 if x==QX else L_KB-L_QB
            for r in range(4): E(f"ds_write_b16{'_d16_hi' if r%2 else ''} v{VQW}, v{y+r//2} offset:{off+r*272}")
    E("s_lshl_b32 s52, s50, 5"); E("s_add_u32 s52, s52, s5"); E("s_lshl_b32 s52, s52, 11")
    E(f"s_lshl_b32 s53, s{SWAVE}, 9"); E("s_add_u32 s53, s53, s52"); E(f"s_add_u32 s53, s53, {hex(WS_VM)}"); E(f"v_lshrrev_b32 v120, 1, v{VFR}")
    E(f"buffer_store_dwordx2 v[{VY}:{VY+1}], v120, {S(SW)}, s53 offen sc1")
    E("s_waitcnt lgkmcnt(0)"); E("s_barrier")
    TS(3)
    l=uid("pk"); l2=uid("pk2"); E("s_cmp_eq_u32 s50, 63"); E(f"s_cbranch_scc1 {l}")
    E("v_readfirstlane_b32 s60, v123"); E("s_nop 3"); E("s_cmp_ge_u32 s60, 16"); E(f"s_cbranch_scc1 {l2}"); wait_cnt(58,16); L(l2)
    prefetch_k(54); L(l)
    for t in range(4): E(f"ds_read_b128 v[{QX+4*t}:{QX+4*t+3}], v{VQR} offset:{t*64}")
    for t in range(4): E(f"ds_read_b128 v[{RING+4*t}:{RING+4*t+3}], v{VQR} offset:{L_KB-L_QB+t*64}")
    E("v_and_b32 v120, 7, v2"); E("v_lshlrev_b32 v120, 8, v120"); E("v_lshl_add_u32 v120, v3, 4, v120"); E(f"s_lshl_b32 s34, s{SWAVE}, 6"); E("v_add_u32 v120, s34, v120")
    E(f"s_add_u32 s53, s52, {hex(WS_KM)}")
    E(f"v_add_u32 v121, {L_KB-L_OB}, v{VOW}"); E("ds_read_b128 v[112:115], v121")
    for t in range(4):
        E(f"s_waitcnt lgkmcnt({8-t})")
        for kt in range(2):
            E(f"v_mfma_f32_16x16x32_bf16 v[{SD+4+4*kt}:{SD+7+4*kt}], v[{AF+(kt*4+t)*4}:{AF+(kt*4+t)*4+3}], v[{QX+4*t}:{QX+4*t+3}], {'0' if t==0 else V(SD+4+4*kt,4)}")
    E("s_waitcnt lgkmcnt(0)")
    E(f"buffer_store_dwordx4 v[112:115], v120, {S(SW)}, s53 offen sc1")
    E("s_cmp_eq_u32 s50, 63"); E(f"s_cbranch_scc1 {fin}")
    for t in range(4): E(f"v_mfma_f32_16x16x32_bf16 v[{SD}:{SD+3}], v[{RING+4*t}:{RING+4*t+3}], v[{QX+4*t}:{QX+4*t+3}], {'0' if t==0 else V(SD,4)}")
    E("s_nop 7")
    M=116
    E(f"v_max3_f32 v{M}, v{SD+4}, v{SD+5}, v{SD+6}"); E(f"v_max3_f32 v{M+1}, v{SD+7}, v{SD+8}, v{SD+9}"); E(f"v_max3_f32 v{M}, v{SD+10}, v{SD+11}, v{M}")
    E(f"v_max3_f32 v{M+1}, v{SD}, v{SD+1}, v{M+1}"); E(f"v_max3_f32 v{M}, v{SD+2}, v{SD+3}, v{M}"); E(f"v_max_f32 v{M}, v{M}, v{M+1}")
    greduce(M,M+1,"v_max_f32")
    E(f"v_mul_f32 v{M}, s46, v{M}")
    for i in list(range(4,12))+list(range(4)): E(f"v_fma_f32 v{SD+i}, v{SD+i}, s46, -v{M}")
    for i in list(range(4,12))+list(range(4)): E(f"v_exp_f32 v{SD+i}, v{SD+i}")
    P=QX
    E("s_nop 0")
    for q in range(4): E(f"v_cvt_pk_bf16_f32 v{P+q}, v{SD+4+2*q}, v{SD+5+2*q}")
    E(f"v_cvt_pk_bf16_f32 v{P+4}, v{SD}, v{SD+1}"); E(f"v_cvt_pk_bf16_f32 v{P+5}, v{SD+2}, v{SD+3}")
    O=KX_+4
    OX=60; OY=112
    E(f"v_mfma_f32_16x16x32_bf16 v[{OX}:{OX+3}], v[{VT}:{VT+3}], v[{P}:{P+3}], 0")
    E(f"v_mfma_f32_16x16x32_bf16 v[{OY}:{OY+3}], v[{VT+4}:{VT+7}], v[{P}:{P+3}], 0")
    for q in range(2):
        E(f"v_cndmask_b32 v{P+6+q}, 0, v{P+4+q}, s[40:41]"); E(f"v_cndmask_b32 v{P+8+q}, 0, v{P+4+q}, s[42:43]")
    E("s_nop 1")
    E(f"v_mfma_f32_16x16x16_bf16 v[{OX}:{OX+3}], v[{VY}:{VY+1}], v[{P+6}:{P+7}], v[{OX}:{OX+3}]")
    E(f"v_mfma_f32_16x16x16_bf16 v[{OY}:{OY+3}], v[{VY}:{VY+1}], v[{P+8}:{P+9}], v[{OY}:{OY+3}]")
    E(f"v_add_f32 v{M}, v{SD}, v{SD+1}"); E(f"v_add_f32 v{M+1}, v{SD+2}, v{SD+3}"); E(f"v_add_f32 v{M}, v{M}, v{M+1}"); E(f"v_cndmask_b32 v{M}, 0, v{M}, s[40:41]")
    E(f"v_add_f32 v{M+1}, v{SD+4}, v{SD+5}"); E(f"v_add_f32 v{M+2}, v{SD+6}, v{SD+7}"); E(f"v_add_f32 v{M+3}, v{SD+8}, v{SD+9}"); E(f"v_add_f32 v{M}, v{M}, v{SD+10}")
    E(f"v_add_f32 v{M+1}, v{M+1}, v{SD+11}"); E(f"v_add_f32 v{M+2}, v{M+2}, v{M+3}"); E(f"v_add_f32 v{M}, v{M}, v{M+1}"); E(f"v_add_f32 v{M}, v{M}, v{M+2}")
    greduce(M,M+1,"v_add_f32")
    E(f"v_rcp_f32 v{M}, v{M}"); E("s_nop 4")
    for r in range(4): E(f"v_mul_f32 v{OX+r}, v{OX+r}, v{M}"); E(f"v_mul_f32 v{OY+r}, v{OY+r}, v{M}")
    for r in range(4): E(f"v_cvt_pk_bf16_f32 v{SD+r}, v{OX+r}, v{OY+r}")
    E(f"ds_write_b128 v{VOW}, v[{SD}:{SD+3}]")
    prefetch_v()
    for r in range(16): E(f"v_mov_b32 v{AF+r}, 0")
    E("s_waitcnt lgkmcnt(0)"); E("s_barrier")
    TS(4)
    E(f"v_add_u32 v120, {L_OB-L_QB}, v{VQR}")
    for t in range(4): E(f"ds_read_b128 v[{QX+4*t}:{QX+4*t+3}], v120 offset:{t*64}")
    for t in range(4):
        E(f"s_waitcnt lgkmcnt({3-t})")
        for p in range(4): E(f"v_smfmac_f32_16x16x64_bf16 v[{AF+4*p}:{AF+4*p+3}], v[{QX+4*t}:{QX+4*t+3}], v[{WO+(p*4+t)*8}:{WO+(p*4+t)*8+7}], v{IDX}")
    E("s_and_b32 s34, s50, 1"); E("s_lshl_b32 s34, s34, 19"); E(f"s_add_u32 s55, s34, {hex(WS_PART)}")
    E("s_mov_b32 s56, s55"); E("s_nop 4")
    for p in range(4):
        E(f"buffer_store_dwordx4 v[{AF+4*p}:{AF+4*p+3}], v{VPS}, {S(SW)}, s56 offen{st}"); E("s_add_u32 s56, s56, 0x8000")
    TS(5)
    TS(6)
    pl=uid("pr"); pd=uid("prd"); R=96
    L(pl)
    for u in range(4): E(f"buffer_load_dwordx4 v[{R+4*u}:{R+4*u+3}], v{VRD}, {S(SW)}, s55 offen offset:{u*1024} sc1")
    spin_guard(pd)
    E("s_waitcnt vmcnt(0)")
    E(f"v_max3_u32 v112, v{R}, v{R+4}, v{R+8}"); E(f"v_max_u32 v112, v112, v{R+12}"); E("v_cmp_eq_u32 vcc, -1, v112"); E(f"s_cbranch_vccnz {pl}")
    L(pd)
    TS(7)
    for r in range(4): E(f"v_add_f32 v{R+r}, v{R+r}, v{R+4+r}"); E(f"v_add_f32 v{R+8+r}, v{R+8+r}, v{R+12+r}")
    for r in range(4): E(f"v_add_f32 v{R+r}, v{R+r}, v{R+8+r}")
    E("s_nop 1")
    for r in range(4): E(f"v_add_f32_dpp v{R+r}, v{R+r}, v{R+r} row_ror:8 row_mask:0xf bank_mask:0xf")
    E("s_nop 1"); E(f"v_permlane32_swap_b32 v{R}, v{R+1}"); E(f"v_permlane32_swap_b32 v{R+2}, v{R+3}"); E("s_nop 1")
    E(f"v_add_f32 v{R}, v{R}, v{R+1}"); E(f"v_add_f32 v{R+2}, v{R+2}, v{R+3}"); E("s_nop 1")
    E(f"v_permlane16_swap_b32 v{R}, v{R+2}"); E("s_nop 1"); E(f"v_add_f32 v{R}, v{R}, v{R+2}"); E("s_nop 1")
    E(f"v_mov_b32_dpp v{R+1}, v{R} quad_perm:[2,3,0,1] row_mask:0xf bank_mask:0xf"); E("s_nop 0")
    E(f"v_cvt_pk_bf16_f32 v{R}, v{R}, v{R+1}")
    E("s_add_u32 s34, s51, 0x2000"); E("s_mov_b64 exec, s[44:45]")
    E(f"buffer_store_dword v{R}, v{VMS}, {S(SW)}, s34 offen{st}"); E("s_mov_b64 exec, -1")
    for r in range(4): E(f"v_mov_b32 v{R+4+r}, -1")
    for u in range(4): E(f"buffer_store_dwordx4 v[{R+4}:{R+7}], v{VRD}, {S(SW)}, s55 offen offset:{u*1024}{st}")
    TSflush()
    E("s_add_u32 s50, s50, 1"); E(f"s_branch {top}")
    L(fin)
    E(f"s_mov_b32 s34, {(C_KV+63)*64}"); signal_cnt(34)
```

```python
NAME="adaLN_cond__memory_aug_recurrent_mem_tr__glu_gated_geglu__prompt"
out=[]
import re
def E(s):
    if s.startswith("buffer_"):
        m=re.search(r"offset:(\d+)",s)
        assert not m or int(m.group(1))<4096, s
    out.append("    "+s)
def L(s): out.append(s+":")
def C(s): out.append("    ; "+s)
_uid=[0]
def uid(p):
    _uid[0]+=1; return f"L{p}_{_uid[0]}"
WS_CNT=0x0; WS_MOD=0x8000; WS_MEM=0x10000; WS_PART=0x100000; WS_H1=0x200000; WS_X1=0x400000; WS_H2=0x600000
WS_HF=0x800000; WS_KM=0x1000000; WS_VM=0x1400000; WS_Q=0x2000000; WS_K=0x3000000; WS_VT=0x4000000; WS_PO=0x5000000
WS_SIZE=0x10000000
HFW=1408
C_LN1=0; C_QKV=32; C_Q=48; C_KV=64; C_A=128; C_B=192; C_C=256; NCNT=320
I_X,I_MEM0,I_WQ,I_WK,I_WV,I_WO,I_SEG,I_BX,I_WG,I_WU,I_WD,I_C,I_WMOD,I_OUT,I_DBG,I_WS=range(16)
SZ={I_X:2048*512*2,I_MEM0:8*512*2,I_WQ:512*4096*2,I_WK:512*4096*2,I_WV:512*4096*2,I_WO:4096*512*2,I_WG:512*1376*2,I_WU:512*1376*2,
    I_WD:1376*512*2,I_C:1024,I_WMOD:512*3072*2,I_OUT:2048*512*2,I_DBG:256,I_WS:WS_SIZE}
PB=64
def ptr(i): return PB+2*i
def load_ptrs():
    E("s_load_dwordx16 s[64:79], s[0:1], 0"); E("s_load_dwordx16 s[80:95], s[0:1], 64"); E("s_waitcnt lgkmcnt(0)")
def srd(d,i,size=None):
    E(f"s_mov_b32 s{d}, s{ptr(i)}"); E(f"s_and_b32 s{d+1}, s{ptr(i)+1}, 0xffff")
    E(f"s_mov_b32 s{d+2}, {hex(size if size else SZ[i])}"); E(f"s_mov_b32 s{d+3}, 0x20000")
def S(d,n=4): return f"s[{d}:{d+n-1}]"
def V(d,n=1): return f"v{d}" if n==1 else f"v[{d}:{d+n-1}]"
def A(d,n=1): return f"a{d}" if n==1 else f"a[{d}:{d+n-1}]"
SW=8
def smov(d,val): E(f"s_mov_b32 s{d}, {hex(val) if isinstance(val,int) and (val>64 or val<-16) else val}")
def xreduce(v,t,op,full=True):
    for ctl in ["quad_perm:[1,0,3,2]","quad_perm:[2,3,0,1]","row_half_mirror","row_mirror"]:
        E("s_nop 1"); E(f"{op}_dpp v{v}, v{v}, v{v} {ctl} row_mask:0xf bank_mask:0xf")
    greduce(v,t,op)
def greduce(v,t,op):
    for sw in ["v_permlane16_swap_b32","v_permlane32_swap_b32"]:
        E(f"v_mov_b32 v{t}, v{v}"); E("s_nop 1"); E(f"{sw} v{v}, v{t}"); E("s_nop 1"); E(f"{op} v{v}, v{v}, v{t}")
CFG={"sync":True,"wv":7}
def wait_cnt(idx_sreg_off, target, tmpv=None, label="w"):
    if not CFG["sync"]: return
    b=CFG["wv"]
    l=uid(label); d=uid(label+"d")
    L(l)
    E(f"buffer_load_dword v{b}, off, {S(SW)}, s{idx_sreg_off} sc1")
    E("s_add_u32 s61, s61, 1"); E("s_cmp_gt_u32 s61, 0x40000"); E(f"s_cbranch_scc1 {d}")
    E("s_waitcnt vmcnt(0)"); E(f"v_readfirstlane_b32 s60, v{b}"); E("s_nop 3")
    E(f"s_cmp_ge_u32 s60, {target}"); E(f"s_cbranch_scc1 {d}"); E("s_sleep 2"); E(f"s_branch {l}")
    L(d)
def signal_cnt(idx_sreg_off):
    l=uid("sg"); b=CFG["wv"]
    E("s_waitcnt vmcnt(0) lgkmcnt(0)"); E("s_barrier")
    if not CFG["sync"]: return
    E(f"s_cmp_lg_u32 s{SWAVE}, 0"); E(f"s_cbranch_scc1 {l}")
    E(f"v_mov_b32 v{b}, 1"); E("s_mov_b64 exec, 1")
    E(f"buffer_atomic_add v{b}, off, {S(SW)}, s{idx_sreg_off} sc1")
    E("s_mov_b64 exec, -1")
    L(l)
SWAVE=4
def kd(name,vgpr,acc,sgpr=102):
    return f""".section .rodata,"a"
.p2align 6
.amdhsa_kernel {name}
  .amdhsa_next_free_vgpr {vgpr}
  .amdhsa_next_free_sgpr {sgpr}
  .amdhsa_accum_offset {acc}
  .amdhsa_group_segment_fixed_size 0
  .amdhsa_kernarg_size 128
  .amdhsa_user_sgpr_count 2
  .amdhsa_user_sgpr_kernarg_segment_ptr 1
  .amdhsa_system_sgpr_workgroup_id_x 1
.end_amdhsa_kernel
.text
"""
def khead(name):
    out.append(f".globl {name}\n.p2align 8\n.type {name},@function"); L(name)
def cvt_bf16_round_f32(v,t):
    E(f"v_cvt_pk_bf16_f32 v{v}, v{v}, v{v}"); E(f"v_lshlrev_b32 v{v}, 16, v{v}")

def lane_setup():
    E("v_and_b32 v1, 63, v0"); E("v_and_b32 v2, 15, v0"); E("v_bfe_u32 v3, v0, 4, 2"); E("v_lshrrev_b32 v4, 6, v0"); E("s_nop 0")
    E(f"v_readfirstlane_b32 s{SWAVE}, v4"); E("s_nop 3")

import os
PROF=os.environ.get("PROF")=="1"
def RT(i):
    if PROF: E(f"s_memrealtime s[{96+2*i}:{97+2*i}]")
def RTflush(base,idreg,keep=False):
    if not PROF: return
    E("s_memrealtime s[62:63]"); E("s_waitcnt lgkmcnt(0)")
    for i in range(3): E(f"v_mov_b32 v{8+i}, s{96+2*i}")
    E("v_mov_b32 v11, s62"); E(f"s_lshl_b32 s34, s{idreg}, 4"); E(f"s_add_u32 s34, s34, {hex(base)}"); E("v_mov_b32 v12, 0"); E("s_mov_b64 exec, 1")
    E(f"buffer_store_dwordx4 v[8:11], v12, {S(SW)}, s34 offen"); E("s_mov_b64 exec, -1")
```

```python
from common import *
import common, os
def k0():
    name="init_kernel"; khead(name)
    E("s_cmp_ge_u32 s2, 256"); E("s_cbranch_scc1 L_k0_end")
    load_ptrs(); srd(SW,I_WS)
    E("v_lshlrev_b32 v1, 4, v0")
    E("s_lshl_b32 s3, s2, 12"); E("v_add_u32 v1, s3, v1")
    for i in range(4): E(f"v_mov_b32 v{4+i}, -1"); E(f"v_mov_b32 v{8+i}, 0")
    smov(20,WS_PART); E(f"buffer_store_dwordx4 v[4:7], v1, {S(SW)}, s20 offen")
    E("s_cmp_ge_u32 s2, 144"); E("s_cbranch_scc1 L_k0_a")
    smov(20,WS_MEM); E(f"buffer_store_dwordx4 v[4:7], v1, {S(SW)}, s20 offen")
    L("L_k0_a")
    E("s_cmp_ge_u32 s2, 8"); E("s_cbranch_scc1 L_k0_b")
    E(f"buffer_store_dwordx4 v[8:11], v1, {S(SW)}, 0 offen")
    L("L_k0_b")
    E("s_cmp_ge_u32 s2, 2"); E("s_cbranch_scc1 L_k0_c")
    srd(12,I_MEM0)
    E("s_lshl_b32 s3, s2, 8"); E("v_add_u32 v12, s3, v0")
    E("v_lshrrev_b32 v13, 2, v12"); E("v_lshlrev_b32 v13, 3, v13")
    E("v_and_b32 v14, 3, v12"); E("v_lshlrev_b32 v14, 11, v14"); E("v_add_u32 v13, v13, v14")
    E(f"buffer_load_dwordx2 v[4:5], v13, {S(12)}, 0 offen"); E(f"buffer_load_dwordx2 v[6:7], v13, {S(12)}, 0 offen offset:1024")
    E("s_waitcnt vmcnt(0)")
    smov(20,WS_MEM); E(f"buffer_store_dwordx4 v[4:7], v1, {S(SW)}, s20 offen")
    L("L_k0_c")
    E("s_cmp_ge_u32 s2, 96"); E("s_cbranch_scc1 L_k0_end")
    srd(12,I_WMOD); srd(16,I_C)
    E("v_lshrrev_b32 v20, 4, v0")
    E("v_and_b32 v21, 15, v0")
    E("v_mul_u32_u24 v22, 196608, v20" )
    E("v_lshl_add_u32 v22, v21, 2, v22"); E("s_lshl_b32 s3, s2, 6"); E("v_add_u32 v22, s3, v22")
    E("v_lshlrev_b32 v23, 6, v20")
    for i in range(4): E(f"buffer_load_dwordx4 v[{24+4*i}:{27+4*i}], v23, {S(16)}, 0 offen offset:{16*i}")
    for i in range(32):
        smov(20,i*6144); E(f"buffer_load_dword v{64+i}, v22, {S(12)}, s20 offen")
    E("v_mov_b32 v40, 0"); E("v_mov_b32 v41, 0"); smov(21,0xbfb8aa3b)
    E("s_waitcnt vmcnt(32)")
    for i in range(32):
        src=24+i//2; d=100+i
        E(f"v_lshlrev_b32 v{d}, 16, v{src}" if i%2==0 else f"v_and_b32 v{d}, 0xffff0000, v{src}")
        E(f"v_mul_f32 v42, s21, v{d}"); E("v_exp_f32 v42, v42"); E("s_nop 0"); E("v_add_f32 v42, 1.0, v42"); E("v_rcp_f32 v42, v42"); E("s_nop 0")
        E(f"v_mul_f32 v{d}, v{d}, v42"); cvt_bf16_round_f32(d,None)
    E("s_waitcnt vmcnt(0)")
    for i in range(32):
        E(f"v_lshlrev_b32 v42, 16, v{64+i}"); E(f"v_and_b32 v43, 0xffff0000, v{64+i}")
        E(f"v_fmac_f32 v40, v{100+i}, v42"); E(f"v_fmac_f32 v41, v{100+i}, v43")
    E("v_lshlrev_b32 v44, 3, v0"); E("ds_write_b64 v44, v[40:41]"); E("s_waitcnt lgkmcnt(0)"); E("s_barrier")
    E("v_cmp_gt_u32 vcc, 16, v0"); E("s_and_saveexec_b64 s[22:23], vcc"); E("s_cbranch_execz L_k0_end")
    for i in range(16): E(f"ds_read_b64 v[{64+2*i}:{65+2*i}], v44 offset:{i*128}")
    E("s_waitcnt lgkmcnt(0)")
    for i in range(1,16): E(f"v_add_f32 v64, v64, v{64+2*i}"); E(f"v_add_f32 v65, v65, v{65+2*i}")
    cvt_bf16_round_f32(64,None); cvt_bf16_round_f32(65,None)
    E("s_lshl_b32 s3, s2, 7"); E("v_add_u32 v44, s3, v44"); smov(20,WS_MOD)
    E(f"buffer_store_dwordx2 v[64:65], v44, {S(SW)}, s20 offen")
    L("L_k0_end"); E("s_endpgm"); out.append(kd(name,136,136))

def unpack8(src,dst):
    for i in range(4):
        E(f"v_lshlrev_b32 v{dst+2*i}, 16, v{src+i}"); E(f"v_and_b32 v{dst+2*i+1}, 0xffff0000, v{src+i}")
def ln_row(x,sc,sh,t,dst):
    E(f"v_add_f32 v{t}, v{x}, v{x+1}")
    for i in range(2,8): E(f"v_add_f32 v{t}, v{t}, v{x+i}")
    xreduce(t,t+1,"v_add_f32"); E(f"v_mul_f32 v{t}, 0x3b000000, v{t}")
    for i in range(8): E(f"v_sub_f32 v{x+i}, v{x+i}, v{t}")
    E(f"v_mul_f32 v{t}, v{x}, v{x}")
    for i in range(1,8): E(f"v_fmac_f32 v{t}, v{x+i}, v{x+i}")
    xreduce(t,t+1,"v_add_f32"); E(f"v_mov_b32 v{t+1}, 0x3727c5ac"); E(f"v_fmac_f32 v{t+1}, 0x3b000000, v{t}")
    E(f"v_rsq_f32 v{t}, v{t+1}"); E("s_nop 0")
    for i in range(8): E(f"v_mul_f32 v{x+i}, v{x+i}, v{t}"); E(f"v_fma_f32 v{x+i}, v{x+i}, v{sc+i}, v{sh+i}")
    for i in range(4): E(f"v_cvt_pk_bf16_f32 v{dst+i}, v{x+2*i}, v{x+2*i+1}")
def load_mod8(dst,chunk,voff):
    smov(20,WS_MOD+chunk*2048)
    E(f"buffer_load_dwordx4 v[{dst}:{dst+3}], v{voff}, {S(SW)}, s20 offen"); E(f"buffer_load_dwordx4 v[{dst+4}:{dst+7}], v{voff}, {S(SW)}, s20 offen offset:16")
def one_plus(sc):
    for i in range(8): E(f"v_add_f32 v{sc+i}, 1.0, v{sc+i}"); cvt_bf16_round_f32(sc+i,None)
def ln1_task():
    srd(16,I_X)
    E("v_lshlrev_b32 v4, 5, v1"); load_mod8(16,0,4); load_mod8(24,1,4)
    E("s_lshl_b32 s32, s5, 4"); E(f"s_lshl_b32 s33, s{SWAVE}, 2"); E("s_add_u32 s32, s32, s33"); E("s_lshl_b32 s32, s32, 10")
    E("v_lshlrev_b32 v5, 4, v1")
    for i in range(4): E(f"buffer_load_dwordx4 v[{32+4*i}:{35+4*i}], v5, {S(16)}, s32 offen offset:{1024*i}")
    E("s_waitcnt vmcnt(4)"); one_plus(24)
    E(f"s_lshl_b32 s33, s5, 14"); E(f"s_lshl_b32 s34, s{SWAVE}, 6"); E("s_add_u32 s33, s33, s34"); E(f"s_add_u32 s33, s33, {hex(WS_H1)}")
    E("v_lshrrev_b32 v6, 2, v1"); E("v_lshlrev_b32 v6, 10, v6"); E("v_and_b32 v7, 3, v1"); E("v_lshl_add_u32 v6, v7, 8, v6")
    for i in range(4):
        E(f"s_waitcnt vmcnt({3-i})" if i==0 else "s_nop 0")
        if i==0: E("s_waitcnt vmcnt(0)")
        unpack8(32+4*i,48); ln_row(48,24,16,56,60)
        E(f"buffer_store_dwordx4 v[60:63], v6, {S(SW)}, s33 offen offset:{16*i}"); E("s_nop 1")

RB=16; FR=112; AB=176
def gemm(MT,nk,aload,bsrd,vB,bstride,alds=None):
    pre = aload is None
    Ln = 8+(0 if pre else MT)
    def areg(t,mt): return AB+((t%2)*MT+mt)*4 if alds else AB+((t*MT+mt)*4 if pre else ((t%4)*MT+mt)*4)
    def ldsA(t): return [f"ds_read_b128 v[{areg(t,mt)}:{areg(t,mt)+3}], v{alds[mt//4]} offset:{(mt%4)*16384+t*1024}" for mt in range(MT)]
    def loads(t):
        o=[]
        for i in range(8): o.append(f"buffer_load_dwordx4 v[{RB+(t%3)*32+4*i}:{RB+(t%3)*32+4*i+3}], v{vB}, {S(bsrd)}, s{24+i} offen")
        if not pre:
            for mt in range(MT): o.append(aload(t,areg(t,mt),mt))
        o.append(f"v_add_u32 v{vB}, s23, v{vB}")
        return o
    def perms(t):
        o=[]; rb=RB+(t%3)*32; fr=FR+(t%2)*32
        for j in range(8):
            for ii in range(4):
                o.append(f"v_perm_b32 v{fr+4*j+ii}, v{rb+(2*ii+1)*4+j//2}, v{rb+(2*ii)*4+j//2}, s{21 if j%2==0 else 22}")
        return o
    smov(21,0x05040100); smov(22,0x07060302); smov(23,32*bstride)
    for i in range(8): smov(24+i,i*bstride)
    for t in range(min(3,nk)):
        for x in loads(t): E(x)
    E(f"s_waitcnt vmcnt({Ln*(min(3,nk)-1)})")
    for x in perms(0): E(x)
    if alds:
        for x in ldsA(0): E(x)
    for t in range(nk):
        outst = Ln if t+2<nk else 0
        E(f"s_waitcnt vmcnt({outst})"+(" lgkmcnt(0)" if alds else ""))
        fill=[]
        if alds and t+1<nk: fill+=ldsA(t+1)
        if t+1<nk: fill+=perms(t+1)
        ld = loads(t+3) if t+3<nk else []
        mf=[]
        for j in range(8):
            for mt in range(MT):
                d=(mt*8+j)*4; c = "0" if t==0 else A(d,4)
                mf.append(f"v_mfma_f32_16x16x32_bf16 {A(d,4)}, v[{areg(t,mt)}:{areg(t,mt)+3}], v[{FR+(t%2)*32+4*j}:{FR+(t%2)*32+4*j+3}], {c}")
        fill = ld+fill
        n=len(mf); k=0
        E("s_nop 1")
        for i,m in enumerate(mf):
            E(m)
            tgt=(len(fill)*(i+1)+n-1)//n
            while k<tgt and k<len(fill): E(fill[k]); k+=1
    E("s_nop 7"); E("s_nop 7")
def rdacc(v,a): E(f"v_accvgpr_read_b32 v{v}, a{a}")

def qkv_task(load_a):
    if load_a is not None:
        l=uid("na"); E(f"s_cmp_eq_u32 s{load_a}, 0"); E(f"s_cbranch_scc1 {l}")
        E("v_lshlrev_b32 v5, 4, v1"); E("s_lshl_b32 s39, s33, 17"); E(f"s_lshl_b32 s38, s{SWAVE}, 15"); E("s_add_u32 s39, s39, s38"); E(f"s_add_u32 s39, s39, {hex(WS_H1)}")
        for i in range(8):
            E("s_mov_b32 m0, s38"); E("s_nop 0")
            for q in range(4): E(f"buffer_load_dwordx4 v5, {S(SW)}, s39 offen offset:{q*1024} lds")
            E("s_add_u32 s38, s38, 4096"); E("s_add_u32 s39, s39, 4096")
        L(l)
    E("s_mov_b32 s42, s34")
    E("s_lshl_b32 s34, s34, 2"); E(f"s_add_u32 s34, s34, s{SWAVE}")
    E("s_lshr_b32 s36, s34, 5"); E("s_and_b32 s37, s34, 31")
    srd(12,I_WQ)
    for m,i in ((1,I_WK),(2,I_WV)):
        l=uid("m"); E(f"s_cmp_lg_u32 s36, {m}"); E(f"s_cbranch_scc1 {l}"); srd(12,i); L(l)
    E("v_lshlrev_b32 v4, 16, v3"); E("v_lshl_add_u32 v4, v2, 4, v4"); E("s_lshl_b32 s38, s37, 8"); E("v_add_u32 v4, s38, v4")
    E("v_lshlrev_b32 v5, 4, v1"); E("v_add_u32 v6, 0x10000, v5")
    E("s_waitcnt vmcnt(0)"); E("s_barrier")
    PQ=os.environ.get("PROFQ")=="1"
    if PQ: RT(1)
    gemm(8,16,None,12,4,8192,alds=(5,6))
    if PQ: RT(2)
    E("s_lshl_b32 s40, s33, 7"); E("s_add_u32 s40, s40, s37"); E("s_lshl_b32 s40, s40, 13")
    lv=uid("v"); le=uid("e")
    E("s_cmp_eq_u32 s36, 2"); E(f"s_cbranch_scc1 {lv}")
    E("s_lshl_b32 s41, s36, 24"); E(f"s_add_u32 s41, s41, {hex(WS_Q)}"); E("s_add_u32 s40, s40, s41")
    E("v_lshrrev_b32 v8, 2, v2"); E("v_lshlrev_b32 v8, 10, v8"); E("v_and_b32 v9, 3, v2"); E("v_lshl_add_u32 v8, v9, 8, v8"); E("v_lshl_add_u32 v8, v3, 6, v8")
    for mt in range(8):
        smov(41,(mt//2)*32*8192+(mt%2)*4096); E("s_add_u32 s41, s41, s40")
        for r in range(4):
            b=16+((mt*4+r)%8)*12
            for j in range(8): rdacc(b+j,(mt*8+j)*4+r)
            for jj in range(4): E(f"v_cvt_pk_bf16_f32 v{b+8+jj}, v{b+2*jj}, v{b+2*jj+1}")
            E(f"buffer_store_dwordx4 v[{b+8}:{b+11}], v8, {S(SW)}, s41 offen offset:{r*16} sc1")
    E(f"s_branch {le}")
    L(lv)
    E(f"s_add_u32 s40, s40, {hex(WS_VT)}")
    E("v_lshrrev_b32 v8, 2, v2"); E("v_lshlrev_b32 v8, 11, v8"); E("v_and_b32 v9, 3, v2"); E("v_lshl_add_u32 v8, v9, 6, v8"); E("v_lshl_add_u32 v8, v3, 8, v8")
    for sg in range(4):
        smov(41,sg*32*8192); E("s_add_u32 s41, s41, s40")
        for j in range(8):
            b=16+(j%8)*12
            for hh in range(2):
                for r in range(4): rdacc(b+hh*4+r,((2*sg+hh)*8+j)*4+r)
            for q in range(4): E(f"v_cvt_pk_bf16_f32 v{b+8+q}, v{b+2*q}, v{b+2*q+1}")
            E(f"buffer_store_dwordx4 v[{b+8}:{b+11}], v8, {S(SW)}, s41 offen offset:{(j%2)*1024+(j//2)*16} sc1")
    L(le)
    E(f"s_add_u32 s35, s33, {C_QKV}"); E("s_cmp_lt_u32 s42, 8"); E(f"s_cselect_b32 s41, {C_Q-C_QKV}, 0"); E("s_add_u32 s35, s35, s41"); E("s_lshl_b32 s35, s35, 6"); signal_cnt(35)
    if PQ: common.RTflush(0xE1000,5,keep=True); E("s_endpgm")
def qkv_phase():
    def dm(): E(f"s_mul_hi_u32 s34, s5, {hex((2**32+13)//14)}"); E("s_mul_i32 s33, s34, 14"); E("s_sub_u32 s33, s5, s33")
    dm(); E("s_add_u32 s34, s34, 8"); E("s_mov_b32 s62, 1"); E("s_mov_b32 s63, 0")
    top=uid("q2"); done=uid("q2d")
    L(top)
    qkv_task(62)
    E("s_cmp_lg_u32 s63, 0"); E(f"s_cbranch_scc1 {done}"); E("s_mov_b32 s63, 1")
    dm(); E("s_mov_b32 s62, 0")
    E("s_cmp_lt_u32 s34, 8"); E(f"s_cbranch_scc1 {top}")
    E("s_sub_u32 s35, s5, 112")
    E("s_cmp_ge_u32 s35, 48"); E(f"s_cbranch_scc1 {done}")
    E("s_mov_b32 s62, 1"); E("s_and_b32 s33, s35, 1"); E("s_add_u32 s33, s33, 14"); E("s_lshr_b32 s34, s35, 1"); E(f"s_branch {top}")
    L(done)
```

```python
from common import *
from parts1 import *
CEXP=0x3e0293ee
ACCV=96
def breg(t,j): return A((t*8+j)*4,4) if t<8 else V(160+((t-8)*8+j)*4,4)
def wload(nk,bsrd,vB,bstride):
    NB=4
    smov(21,0x05040100); smov(22,0x07060302); smov(23,32*bstride)
    for i in range(8): smov(24+i,i*bstride)
    def loads(t):
        for i in range(8): E(f"buffer_load_dwordx4 v[{16+(t%NB)*32+4*i}:{16+(t%NB)*32+4*i+3}], v{vB}, {S(bsrd)}, s{24+i} offen")
        E(f"v_add_u32 v{vB}, s23, v{vB}")
    for t in range(NB): loads(t)
    for t in range(nk):
        E(f"s_waitcnt vmcnt({8*min(NB-1,nk-1-t)})")
        rb=16+(t%NB)*32; fr=176 if t<8 else 160+(t-8)*32
        for j in range(8):
            for ii in range(4): E(f"v_perm_b32 v{fr+4*j+ii}, v{rb+(2*ii+1)*4+j//2}, v{rb+(2*ii)*4+j//2}, s{21 if j%2==0 else 22}")
        if t+NB<nk: loads(t+NB)
        if t<8:
            for q in range(32): E(f"v_accvgpr_write_b32 a{t*32+q}, v{176+q}")
    E("s_nop 3")
def smm(nk,AF,wait):
    for t in range(nk):
        w=wait(t)
        if w: E(w)
        for j in range(8):
            for mt in range(2):
                d=ACCV+(mt*8+j)*4
                E(f"v_mfma_f32_16x16x32_bf16 {V(d,4)}, {V(AF+(t*2+mt)*4,4)}, {breg(t,j)}, {'0' if t==0 else V(d,4)}")
    E("s_nop 7"); E("s_nop 7")
def rdv(v,a): E(f"v_mov_b32 v{v}, v{ACCV+a}")
def initA():
    srd(12,I_WO)
    E("v_lshlrev_b32 v10, 13, v3"); E("v_lshl_add_u32 v10, v2, 4, v10"); E("s_lshl_b32 s49, s33, 18"); E(f"s_lshl_b32 s50, s{SWAVE}, 8"); E("s_add_u32 s49, s49, s50"); E("v_add_u32 v10, s49, v10")
    wload(8,12,10,1024)
def initC():
    l=uid("cg"); srd(12,I_WG); E(f"s_cmp_lt_u32 s{SWAVE}, 2"); E(f"s_cbranch_scc1 {l}"); srd(12,I_WU); L(l)
    E(f"s_and_b32 s36, s{SWAVE}, 1")
    E("v_mul_u32_u24 v10, 22016, v3"); E("v_lshl_add_u32 v10, v2, 4, v10"); E(f"s_mul_i32 s37, s36, {256*2752}"); E("s_lshl_b32 s38, s33, 8"); E("s_add_u32 s37, s37, s38"); E("v_add_u32 v10, s37, v10")
    wload(8,12,10,2752)
def initD():
    srd(12,I_WD)
    E("v_lshlrev_b32 v10, 13, v3"); E("v_lshl_add_u32 v10, v2, 4, v10"); E(f"s_mul_i32 s37, s{SWAVE}, {352*1024}"); E("s_lshl_b32 s38, s33, 8"); E("s_add_u32 s37, s37, s38"); E("v_add_u32 v10, s37, v10")
    wload(11,12,10,1024)
def taskA():
    E(f"s_add_u32 s35, s32, {C_KV}"); E("s_lshl_b32 s35, s35, 6"); wait_cnt(35,32)
    E("s_lshr_b32 s35, s32, 2"); E(f"s_add_u32 s35, s35, {C_Q}"); E("s_lshl_b32 s35, s35, 6"); wait_cnt(35,8)
    E(f"s_lshr_b32 s36, s{SWAVE}, 1"); E(f"s_and_b32 s37, s{SWAVE}, 1")
    E("s_lshl_b32 s38, s33, 1"); E("s_add_u32 s38, s38, s36")
    E("s_lshl_b32 s39, s32, 5"); E("s_add_u32 s39, s39, s38")
    E("s_lshl_b32 s40, s39, 13"); E("s_lshl_b32 s41, s39, 11")
    Q=16;K=32;KM=64;VT=80;VM=112;SD=120;P=132;M=144;OX=148;OY=152;OF=156
    E("v_lshlrev_b32 v4, 4, v1")
    E("s_lshl_b32 s42, s37, 12"); E("s_add_u32 s42, s42, s40"); E(f"s_add_u32 s42, s42, {hex(WS_Q)}")
    for t in range(4): E(f"buffer_load_dwordx4 v[{Q+4*t}:{Q+4*t+3}], v4, {S(SW)}, s42 offen offset:{t*1024} sc1")
    E("v_and_b32 v5, 7, v2"); E("v_lshlrev_b32 v5, 8, v5"); E("v_lshl_add_u32 v5, v3, 4, v5"); E(f"s_add_u32 s43, s41, {hex(WS_KM)}")
    for t in range(4): E(f"buffer_load_dwordx4 v[{KM+4*t}:{KM+4*t+3}], v5, {S(SW)}, s43 offen offset:{t*64} sc1")
    E(f"s_add_u32 s42, s40, {hex(WS_K)}"); E("s_add_u32 s43, s42, 4096")
    for kt in range(2):
        for t in range(4): E(f"buffer_load_dwordx4 v[{K+(kt*4+t)*4}:{K+(kt*4+t)*4+3}], v4, {S(SW)}, s{42+kt} offen offset:{t*1024} sc1")
    E(f"s_add_u32 s42, s40, {hex(WS_VT)}"); E("s_add_u32 s43, s42, 4096")
    for i in range(8): E(f"buffer_load_dwordx4 v[{VT+4*i}:{VT+4*i+3}], v4, {S(SW)}, s{42+i//4} offen offset:{(i%4)*1024} sc1")
    E("v_lshlrev_b32 v6, 3, v1"); E(f"s_add_u32 s43, s41, {hex(WS_VM)}")
    for w in range(4): E(f"buffer_load_dwordx2 v[{VM+2*w}:{VM+2*w+1}], v6, {S(SW)}, s43 offen offset:{w*512} sc1")
    E("s_mov_b32 s44, -1"); E("s_mov_b32 s45, 0"); E("s_mov_b32 s46, 0"); E("s_mov_b32 s47, -1"); smov(48,CEXP)
    E("s_lshl_b32 s49, s37, 4"); E("v_lshlrev_b32 v7, 2, v3"); E("v_sub_u32 v7, v2, v7"); E("v_add_u32 v7, s49, v7")
    E("v_subrev_u32 v8, 16, v7"); E("v_mov_b32 v9, 0xf149f2ca")
    E("s_waitcnt vmcnt(20)")
    for t in range(4): E(f"v_mfma_f32_16x16x32_bf16 v[{SD}:{SD+3}], v[{KM+4*t}:{KM+4*t+3}], v[{Q+4*t}:{Q+4*t+3}], {'0' if t==0 else V(SD,4)}")
    E("s_waitcnt vmcnt(12)")
    for t in range(4):
        for kt in range(2): E(f"v_mfma_f32_16x16x32_bf16 v[{SD+4+4*kt}:{SD+7+4*kt}], v[{K+(kt*4+t)*4}:{K+(kt*4+t)*4+3}], v[{Q+4*t}:{Q+4*t+3}], {'0' if t==0 else V(SD+4+4*kt,4)}")
    E("s_nop 7")
    for kt in range(2):
        for r in range(4):
            E(f"v_cmp_le_i32 vcc, {r}, v{7+kt}"); E(f"v_cndmask_b32 v{SD+4+4*kt+r}, v9, v{SD+4+4*kt+r}, vcc")
    E(f"v_max3_f32 v{M}, v{SD+4}, v{SD+5}, v{SD+6}"); E(f"v_max3_f32 v{M+1}, v{SD+7}, v{SD+8}, v{SD+9}"); E(f"v_max3_f32 v{M}, v{SD+10}, v{SD+11}, v{M}")
    E(f"v_max3_f32 v{M+1}, v{SD}, v{SD+1}, v{M+1}"); E(f"v_max3_f32 v{M}, v{SD+2}, v{SD+3}, v{M}"); E(f"v_max_f32 v{M}, v{M}, v{M+1}")
    greduce(M,M+1,"v_max_f32")
    E(f"v_mul_f32 v{M}, s48, v{M}")
    for i in range(12): E(f"v_fma_f32 v{SD+i}, v{SD+i}, s48, -v{M}")
    for i in range(12): E(f"v_exp_f32 v{SD+i}, v{SD+i}")
    E("s_nop 0")
    for q in range(4): E(f"v_cvt_pk_bf16_f32 v{P+q}, v{SD+4+2*q}, v{SD+5+2*q}")
    E(f"v_cvt_pk_bf16_f32 v{P+4}, v{SD}, v{SD+1}"); E(f"v_cvt_pk_bf16_f32 v{P+5}, v{SD+2}, v{SD+3}")
    for q in range(2): E(f"v_cndmask_b32 v{P+6+q}, 0, v{P+4+q}, s[44:45]"); E(f"v_cndmask_b32 v{P+8+q}, 0, v{P+4+q}, s[46:47]")
    E(f"v_add_f32 v{M}, v{SD}, v{SD+1}"); E(f"v_add_f32 v{M+1}, v{SD+2}, v{SD+3}"); E(f"v_add_f32 v{M}, v{M}, v{M+1}"); E(f"v_cndmask_b32 v{M}, 0, v{M}, s[44:45]")
    E(f"v_add_f32 v{M+1}, v{SD+4}, v{SD+5}"); E(f"v_add_f32 v{M+2}, v{SD+6}, v{SD+7}"); E(f"v_add_f32 v{M+3}, v{SD+8}, v{SD+9}"); E(f"v_add_f32 v{M}, v{M}, v{SD+10}")
    E(f"v_add_f32 v{M+1}, v{M+1}, v{SD+11}"); E(f"v_add_f32 v{M+2}, v{M+2}, v{M+3}"); E(f"v_add_f32 v{M}, v{M}, v{M+1}"); E(f"v_add_f32 v{M}, v{M}, v{M+2}")
    greduce(M,M+1,"v_add_f32")
    E(f"v_rcp_f32 v{M}, v{M}")
    E("s_waitcnt vmcnt(0)")
    ACC=176
    for w in range(4):
        for b in range(2): E(f"v_mfma_f32_16x16x32_bf16 v[{ACC+(w*2+b)*4}:{ACC+(w*2+b)*4+3}], v[{VT+(w*2+b)*4}:{VT+(w*2+b)*4+3}], v[{P}:{P+3}], 0")
    for w in range(4):
        for b in range(2): E(f"v_mfma_f32_16x16x16_bf16 v[{ACC+(w*2+b)*4}:{ACC+(w*2+b)*4+3}], v[{VM+2*w}:{VM+2*w+1}], v[{P+6+2*b}:{P+7+2*b}], v[{ACC+(w*2+b)*4}:{ACC+(w*2+b)*4+3}]")
    E("s_lshl_b32 s49, s36, 13"); E("s_lshl_b32 s50, s37, 10"); E("s_add_u32 s49, s49, s50"); E("v_add_u32 v5, s49, v4")
    E("s_nop 7")
    for w in range(4):
        x=ACC+w*8; y=x+4
        for r in range(4): E(f"v_mul_f32 v{x+r}, v{x+r}, v{M}"); E(f"v_mul_f32 v{y+r}, v{y+r}, v{M}")
        for r in range(4): E(f"v_cvt_pk_bf16_f32 v{OF+4*w+r}, v{x+r}, v{y+r}")
        E(f"ds_write_b128 v5, v[{OF+4*w}:{OF+4*w+3}] offset:{w*2048}")
    E("s_waitcnt lgkmcnt(0)"); E("s_barrier")
    for i in range(16): E(f"ds_read_b128 v[{16+4*i}:{16+4*i+3}], v4 offset:{i*1024}")
    smm(8,16,lambda t: f"s_waitcnt lgkmcnt({14-2*t})")
    E("v_lshlrev_b32 v8, 13, v3"); E("v_lshl_add_u32 v8, v2, 5, v8"); E(f"s_lshl_b32 s50, s{SWAVE}, 9"); E("v_add_u32 v8, s50, v8")
    E("s_lshl_b32 s49, s32, 4"); E("s_add_u32 s49, s49, s33"); E("s_lshl_b32 s49, s49, 16"); E(f"s_add_u32 s49, s49, {hex(WS_PO)}")
    for mt in range(2):
        for r in range(4):
            b=16+((mt*4+r)%4)*8
            for j in range(8): rdv(b+j,(mt*8+j)*4+r)
            if mt==1 and r==0: E("s_add_u32 s49, s49, 0x7000")
            if r==2: E("s_add_u32 s49, s49, 0x1000")
            E(f"buffer_store_dwordx4 v[{b}:{b+3}], v8, {S(SW)}, s49 offen offset:{(r%2)*2048} sc1"); E(f"buffer_store_dwordx4 v[{b+4}:{b+7}], v8, {S(SW)}, s49 offen offset:{(r%2)*2048+16} sc1")
    E(f"s_add_u32 s35, s32, {C_A}"); E("s_lshl_b32 s35, s35, 6"); signal_cnt(35)

def taskB():
    srd(16,I_X)
    E("v_lshlrev_b32 v4, 5, v1"); E("v_lshlrev_b32 v5, 4, v1")
    E("s_lshl_b32 s36, s33, 2"); E(f"s_add_u32 s36, s36, s{SWAVE}")
    E("s_lshl_b32 s37, s32, 5"); E("s_add_u32 s37, s37, s36"); E("s_lshl_b32 s37, s37, 10")
    load_mod8(16,2,4); load_mod8(24,4,4); load_mod8(32,3,4)
    E(f"buffer_load_dwordx4 v[40:43], v5, {S(16)}, s37 offen")
    E(f"s_add_u32 s35, s32, {C_A}"); E("s_lshl_b32 s35, s35, 6"); wait_cnt(35,16)
    E("s_lshl_b32 s38, s32, 20"); E("s_lshl_b32 s39, s36, 11"); E("s_add_u32 s38, s38, s39"); E(f"s_add_u32 s38, s38, {hex(WS_PO)}")
    R=64
    for p in range(16):
        E(f"buffer_load_dwordx4 v[{R+8*p}:{R+8*p+3}], v4, {S(SW)}, s38 offen sc1"); E(f"buffer_load_dwordx4 v[{R+8*p+4}:{R+8*p+7}], v4, {S(SW)}, s38 offen offset:16 sc1")
        E("s_add_u32 s38, s38, 0x10000")
    E("s_waitcnt vmcnt(32)"); one_plus(24); unpack8(40,48)
    for p in range(1,16):
        E(f"s_waitcnt vmcnt({30-2*p})")
        for j in range(8): E(f"v_add_f32 v{R+j}, v{R+j}, v{R+8*p+j}")
    for j in range(8):
        cvt_bf16_round_f32(R+j,None); E(f"v_mul_f32 v{R+j}, v{R+j}, v{16+j}"); cvt_bf16_round_f32(R+j,None); E(f"v_add_f32 v{48+j}, v{48+j}, v{R+j}")
    for q in range(4): E(f"v_cvt_pk_bf16_f32 v{60+q}, v{48+2*q}, v{48+2*q+1}")
    E(f"s_add_u32 s38, s37, {hex(WS_X1)}"); E(f"buffer_store_dwordx4 v[60:63], v5, {S(SW)}, s38 offen sc1")
    unpack8(60,48); ln_row(48,24,32,56,44)
    E(f"s_add_u32 s38, s37, {hex(WS_H2)}"); E(f"buffer_store_dwordx4 v[44:47], v5, {S(SW)}, s38 offen sc1")
    E(f"s_add_u32 s35, s32, {C_B}"); E("s_lshl_b32 s35, s35, 6"); signal_cnt(35)

def red_write():
    E(f"s_lshl_b32 s49, s{SWAVE}, 14"); E("v_lshlrev_b32 v8, 4, v1"); E("v_add_u32 v9, s49, v8")
    for mt in range(2):
        for r in range(4):
            b=16+((mt*4+r)%4)*8
            for j in range(8): rdv(b+j,(mt*8+j)*4+r)
            E(f"ds_write_b128 v9, v[{b}:{b+3}] offset:{(mt*4+r)*2048}"); E(f"ds_write_b128 v9, v[{b+4}:{b+7}] offset:{(mt*4+r)*2048+1024}")
    E("s_waitcnt lgkmcnt(0)"); E("s_barrier")
    E(f"s_lshl_b32 s49, s{SWAVE}, 12"); E("v_add_u32 v9, s49, v8"); E("v_add_u32 v11, 0x8000, v9")
    for rr in range(2):
        for src in range(4):
            for hf in range(2): E(f"ds_read_b128 v[{64+(rr*4+src)*8+hf*4}:{64+(rr*4+src)*8+hf*4+3}], v{9 if src<2 else 11} offset:{(src%2)*16384+rr*2048+hf*1024}")
def fin_row_sreg():
    E(f"s_lshr_b32 s40, s{SWAVE}, 1"); E("s_lshl_b32 s40, s40, 4"); E(f"s_and_b32 s41, s{SWAVE}, 1"); E("s_lshl_b32 s41, s41, 1"); E("s_add_u32 s40, s40, s41")
    E("s_lshl_b32 s41, s32, 5"); E("s_add_u32 s40, s40, s41")
def taskC():
    E(f"s_and_b32 s36, s{SWAVE}, 1")
    E("v_lshlrev_b32 v5, 10, v2"); E("v_lshl_add_u32 v5, v3, 4, v5"); E("v_add_u32 v6, 16384, v5")
    E("s_lshl_b32 s39, s32, 15"); E("s_lshl_b32 s38, s36, 9"); E("s_add_u32 s39, s39, s38"); E(f"s_add_u32 s39, s39, {hex(WS_H2)}")
    E(f"s_add_u32 s35, s32, {C_B}"); E("s_lshl_b32 s35, s35, 6"); wait_cnt(35,8)
    for t in range(8):
        for mt in range(2): E(f"buffer_load_dwordx4 v[{16+(t*2+mt)*4}:{16+(t*2+mt)*4+3}], v{5+mt}, {S(SW)}, s39 offen offset:{t*64} sc1")
    smm(8,16,lambda t: f"s_waitcnt vmcnt({14-2*t})")
    red_write(); fin_row_sreg()
    E(f"v_mul_u32_u24 v12, {4*2816}, v3"); E("v_lshl_add_u32 v12, v2, 4, v12"); E(f"s_mul_i32 s41, s40, 2816"); E("s_lshl_b32 s42, s33, 8"); E("s_add_u32 s41, s41, s42"); E(f"s_add_u32 s41, s41, {hex(WS_HF)}")
    E("s_lshl_b32 s42, s33, 7"); E("v_lshl_add_u32 v13, v2, 3, s42"); E("v_cmp_gt_u32 vcc, 0x560, v13"); E("s_mov_b64 s[44:45], vcc")
    smov(46,0x3d372713); smov(47,0xc0135761)
    E("s_waitcnt lgkmcnt(0)")
    for rr in range(2):
        b=64+rr*32
        for j in range(8):
            g=b+j; u=b+16+j; t=16+2*j
            E(f"v_add_f32 v{g}, v{g}, v{b+8+j}"); E(f"v_add_f32 v{u}, v{u}, v{b+24+j}"); cvt_bf16_round_f32(g,None); cvt_bf16_round_f32(u,None)
            E(f"v_mul_f32 v{t}, v{g}, v{g}"); E(f"v_fma_f32 v{t}, v{t}, s46, 1.0"); E(f"v_mul_f32 v{t}, v{t}, v{g}"); E(f"v_mul_f32 v{t}, s47, v{t}")
        for j in range(8): E(f"v_exp_f32 v{16+2*j}, v{16+2*j}")
        for j in range(8): E(f"v_add_f32 v{16+2*j}, 1.0, v{16+2*j}")
        for j in range(8): E(f"v_rcp_f32 v{16+2*j}, v{16+2*j}")
        E("s_nop 0")
        for j in range(8):
            g=b+j; u=b+16+j
            E(f"v_mul_f32 v{g}, v{g}, v{16+2*j}"); cvt_bf16_round_f32(g,None); E(f"v_mul_f32 v{g}, v{g}, v{u}"); E(f"v_cndmask_b32 v{g}, 0, v{g}, s[44:45]")
        for q in range(4): E(f"v_cvt_pk_bf16_f32 v{32+rr*4+q}, v{b+2*q}, v{b+2*q+1}")
        E(f"buffer_store_dwordx4 v[{32+rr*4}:{35+rr*4}], v12, {S(SW)}, s41 offen offset:{rr*2816} sc1")
    E(f"s_add_u32 s35, s32, {C_C}"); E("s_lshl_b32 s35, s35, 6"); signal_cnt(35)
def taskD():
    srd(16,I_OUT)
    E("v_mul_u32_u24 v5, 2816, v2"); E("v_lshl_add_u32 v5, v3, 4, v5"); E(f"v_add_u32 v6, {16*2816}, v5")
    E(f"s_mul_i32 s39, s32, {32*2816}"); E(f"s_mul_i32 s38, s{SWAVE}, 704"); E("s_add_u32 s39, s39, s38"); E(f"s_add_u32 s39, s39, {hex(WS_HF)}")
    E(f"s_add_u32 s35, s32, {C_C}"); E("s_lshl_b32 s35, s35, 6"); wait_cnt(35,11)
    for t in range(11):
        for mt in range(2): E(f"buffer_load_dwordx4 v[{8+(t*2+mt)*4}:{8+(t*2+mt)*4+3}], v{5+mt}, {S(SW)}, s39 offen offset:{t*64} sc1")
    smm(11,8,lambda t: f"s_waitcnt vmcnt({20-2*t})")
    fin_row_sreg()
    E("v_lshlrev_b32 v12, 12, v3"); E("v_lshl_add_u32 v12, v2, 4, v12"); E("s_lshl_b32 s41, s40, 10"); E("s_lshl_b32 s42, s33, 8"); E("s_add_u32 s41, s41, s42")
    E(f"s_add_u32 s43, s41, {hex(WS_X1)}")
    for rr in range(2): E(f"buffer_load_dwordx4 v[{48+4*rr}:{51+4*rr}], v12, {S(SW)}, s43 offen offset:{rr*1024} sc1")
    E("v_lshlrev_b32 v13, 5, v2"); E("s_lshl_b32 s42, s33, 9"); E(f"s_add_u32 s42, s42, {hex(WS_MOD+5*2048)}")
    E(f"buffer_load_dwordx4 v[56:59], v13, {S(SW)}, s42 offen"); E(f"buffer_load_dwordx4 v[60:63], v13, {S(SW)}, s42 offen offset:16")
    red_write()
    E("s_waitcnt vmcnt(0) lgkmcnt(0)")
    for rr in range(2):
        b=64+rr*32; unpack8(48+4*rr,16)
        for j in range(8):
            g=b+j
            E(f"v_add_f32 v{g}, v{g}, v{b+8+j}"); E(f"v_add_f32 v{b+16+j}, v{b+16+j}, v{b+24+j}"); E(f"v_add_f32 v{g}, v{g}, v{b+16+j}")
            cvt_bf16_round_f32(g,None); E(f"v_mul_f32 v{g}, v{g}, v{56+j}"); cvt_bf16_round_f32(g,None); E(f"v_add_f32 v{g}, v{g}, v{16+j}")
        for q in range(4): E(f"v_cvt_pk_bf16_f32 v{32+rr*4+q}, v{b+2*q}, v{b+2*q+1}")
        E(f"buffer_store_dwordx4 v[{32+rr*4}:{35+rr*4}], v12, {S(16)}, s41 offen offset:{rr*1024}")
    E("s_waitcnt vmcnt(0) lgkmcnt(0)"); E("s_barrier")
```

```python
import sys, os, common
from common import *
import parts1, chain, phase3
mode=sys.argv[1]; dst=sys.argv[2]
hdr=open('cdna_kernels/'+NAME+'.s.ref').read().split('\n')
lines=[l for l in hdr if l.startswith(';') and not l.startswith('; @launch') and not l.startswith('; Override') and not l.startswith('; grid=ceil')]
lines=lines[:18]
LDSW=65536; LDSM=163840
def simple(name,ntask,fn,vg=256,split=None):
    khead(name); E(f"s_cmp_ge_u32 s2, {ntask}"); E(f"s_cbranch_scc1 L_{name}_end")
    load_ptrs(); srd(SW,I_WS); lane_setup(); E("s_mov_b32 s61, 0"); fn()
    L(f"L_{name}_end"); E("s_endpgm"); out.append(kd(name,512,256))
def divmod_s(n):
    E(f"s_mul_hi_u32 s32, s2, {hex((2**32+n-1)//n)}"); E(f"s_mul_i32 s33, s32, {n}"); E("s_sub_u32 s33, s2, s33")
XC=320*64
def load_cnts():
    E("v_lshlrev_b32 v120, 8, v1"); E(f"s_mov_b32 s34, {XC}")
    E(f"buffer_load_dword v121, v120, {S(SW)}, s34 offen sc1"); E("s_waitcnt vmcnt(0)")
    for x in range(8): E(f"v_readlane_b32 s{40+x}, v121, {x}")
    E("s_nop 3"); E("s_mov_b32 s48, 0")
    for x in range(8): E(f"s_add_u32 s48, s48, s{40+x}")
def roles(lbl_worker):
    E("s_getreg_b32 s6, hwreg(HW_REG_XCC_ID)"); E("s_and_b32 s6, s6, 7")
    lw=uid("rw"); l2=uid("r2"); lp=uid("rp"); lq=uid("rq")
    E(f"s_cmp_lg_u32 s{SWAVE}, 0"); E(f"s_cbranch_scc1 {lw}")
    E("v_mov_b32 v5, 0"); E("v_mov_b32 v6, 1"); E("s_mov_b64 exec, 1")
    E("s_lshl_b32 s34, s6, 8"); E(f"s_add_u32 s34, s34, {XC}")
    E(f"buffer_atomic_add v6, v5, {S(SW)}, s34 offen sc0 sc1"); E("s_waitcnt vmcnt(0)"); E("v_readfirstlane_b32 s7, v6"); E("s_nop 3")
    E("s_lshl_b32 s35, s6, 5"); E("s_cmp_lt_u32 s7, 32"); E("s_cselect_b32 s36, 1, 0"); E("s_add_u32 s7, s7, s35")
    E("s_cmp_eq_u32 s36, 1"); E(f"s_cbranch_scc1 {l2}")
    E("v_mov_b32 v6, 1"); E(f"s_mov_b32 s34, {XC+8*256}"); E(f"buffer_atomic_add v6, v5, {S(SW)}, s34 offen sc0 sc1"); E("s_waitcnt vmcnt(0)"); E("v_readfirstlane_b32 s37, v6")
    E("s_mov_b64 exec, -1")
    L(lp); load_cnts(); E("s_add_u32 s61, s61, 1"); E("s_cmp_gt_u32 s61, 0x40000"); E(f"s_cbranch_scc1 {lq}"); E("s_cmp_lt_u32 s48, 256"); E(f"s_cbranch_scc1 {lp}")
    L(lq)
    E("s_mov_b32 s7, 0")
    for x in range(8):
        n=uid("rs")
        E(f"s_min_u32 s49, s{40+x}, 32"); E("s_sub_u32 s50, 32, s49")
        E("s_cmp_lt_u32 s37, s50"); E(f"s_cbranch_scc0 {n}")
        E(f"s_add_u32 s7, s49, s37"); E(f"s_add_u32 s7, s7, {32*x}"); E(f"s_branch {l2}")
        L(n); E("s_sub_u32 s37, s37, s50")
    L(l2)
    E("s_mov_b64 exec, 1"); E("v_mov_b32 v5, 0"); E("v_mov_b32 v6, s7"); E("ds_write_b32 v5, v6"); E("s_mov_b64 exec, -1")
    L(lw)
    E("s_waitcnt lgkmcnt(0)"); E("s_barrier"); E("v_mov_b32 v5, 0"); E("ds_read_b32 v6, v5"); E("s_waitcnt lgkmcnt(0)"); E("v_readfirstlane_b32 s5, v6"); E("s_nop 3"); E("s_barrier")
    lc=uid("rc"); E("s_cmp_lt_u32 s5, 32"); E(f"s_cbranch_scc1 {lc}"); E("s_sub_u32 s5, s5, 32"); E(f"s_branch {lbl_worker}"); L(lc)
def mode_decide(lbl_fast,lbl_slow):
    l=uid("md")
    L(l); load_cnts()
    E("s_cmp_ge_u32 s40, 32"); E(f"s_cbranch_scc1 {lbl_fast}")
    E("s_cmp_ge_u32 s48, 256"); E(f"s_cbranch_scc1 {lbl_slow}")
    E("s_add_u32 s61, s61, 1"); E("s_cmp_gt_u32 s61, 0x40000"); E(f"s_cbranch_scc1 {lbl_slow}"); E("s_sleep 1"); E(f"s_branch {l}")
def worker():

    if os.environ.get("PROFQ")!="1": RT(1)
    parts1.qkv_phase()
    if os.environ.get("PROFQ")!="1": RT(2)
    base=0; end=uid("wend")
    for nm,n,rep,init,task in ROLES:
        nx=uid("role")
        E(f"s_cmp_ge_u32 s5, {base+n*rep}"); E(f"s_cbranch_scc1 {nx}")
        E(f"s_sub_u32 s62, s5, {base}"); E(f"s_mul_hi_u32 s63, s62, {hex((2**32+n-1)//n)}"); E(f"s_mul_i32 s33, s63, {n}"); E("s_sub_u32 s62, s62, s33")
        E("s_mov_b32 s33, s62")
        if init: init()
        t=uid("tl")
        L(t); E("s_mov_b32 s32, s63"); E("s_mov_b32 s33, s62"); task()
        E(f"s_add_u32 s63, s63, {rep}"); E("s_cmp_lt_u32 s63, 64"); E(f"s_cbranch_scc1 {t}"); E(f"s_branch {end}")
        L(nx); base+=n*rep
    assert base<=224
    L(end)
ROLES=[("A",16,6,phase3.initA,phase3.taskA),("C",11,5,phase3.initC,phase3.taskC),("D",4,5,phase3.initD,phase3.taskD),("B",8,6,None,phase3.taskB)]
def main(name,workers):
    khead(name); end=f"L_{name}_end"
    E("s_cmp_ge_u32 s2, 256"); E(f"s_cbranch_scc1 {end}")
    RT(0); load_ptrs(); srd(SW,I_WS); lane_setup(); E("s_mov_b32 s61, 0")
    lw=uid("worker"); lf=uid("fast"); ls=uid("slow")
    roles(lw)
    CFG["wv"]=121
    ls2=uid("slow2"); lf2=uid("fast2")
    mode_decide(lf2,ls2)
    L(lf2); E("s_mov_b32 s59, 1"); lgo=uid("go"); E(f"s_branch {lgo}")
    L(ls2); E("s_mov_b32 s59, 0"); L(lgo)
    chain.chain_prologue()
    RT(1)
    E("s_cmp_eq_u32 s59, 0"); E(f"s_cbranch_scc1 {ls}")
    L(lf); chain.chain_loop(True); RTflush(0xE0000,5); E("s_endpgm")
    L(ls); chain.chain_loop(False); RTflush(0xE0000,5); E("s_endpgm")
    CFG["wv"]=7
    L(lw)
    if workers: worker(); RTflush(0xE1000,5)
    L(end); E("s_endpgm"); out.append(kd(name,512,256))
launch=[]
parts1.k0(); launch.append(("init_kernel",256,2048))
def f(): E("s_mov_b32 s5, s2"); parts1.ln1_task()
simple("ln1_kernel",128,f); launch.append(("ln1_kernel",128,0))
main("main_kernel",True); launch.append(("main_kernel",256,LDSM))
txt="\n".join(lines)+"\n"+"".join(f"; @launch kernel={k} grid=({g},1,1) block=(256,1,1) lds={l}\n" for k,g,l in launch)
txt+='.amdgcn_target "amdgcn-amd-amdhsa--gfx950"\n.text\n'+"\n".join(out)+"\n"
open(dst,'w').write(txt)
print(" ".join(f"{k}:{g}:256:{l}" for k,g,l in launch))
```

```python
from common import *
L_WV=0; L_KX=131072; L_MEM=139264; L_QB=147456; L_KB=149760; L_OB=152064; LDS_CHAIN=154368
AF=16; QX,QY,KX_,KY,VX,VY=48,52,56,60,64,68; VT=72; RING=80; NR=5; SD=96; WO=128
IDX=4; VMW=5; VPOLL=6; VFR=7; VQW=8; VQR=9; VPS=10; VRD=11; VMS=12; VOW=13; VVT=14; VWV=15; T0=120
CEXP=0x3e0293ee
def chain_prologue():
    C("chain prologue: lane consts")
    E("v_cmp_gt_u32 vcc, 8, v2"); E(f"v_mov_b32 v{T0}, 0xeeee"); E(f"v_mov_b32 v{T0+1}, 0x4444"); E(f"v_cndmask_b32 v{IDX}, v{T0}, v{T0+1}, vcc")
    E("s_mov_b32 s40, -1"); E("s_mov_b32 s41, 0"); E("s_mov_b32 s42, 0"); E("s_mov_b32 s43, -1")
    smov(21,0x05040100); smov(22,0x07060302)
    E("v_lshrrev_b32 v120, 1, v3"); E("v_and_b32 v121, 1, v3")
    E("v_lshlrev_b32 v122, 17, v120"); E("v_lshl_add_u32 v122, v121, 15, v122")
    E("v_lshl_add_u32 v122, v2, 2, v122"); E("s_lshl_b32 s32, s5, 8"); E(f"s_lshl_b32 s33, s{SWAVE}, 6"); E("s_add_u32 s32, s32, s33"); E("v_add_u32 v122, s32, v122")
    E(f"s_lshl_b32 s33, s{SWAVE}, 15"); E(f"v_lshlrev_b32 v{VWV}, 4, v1"); E(f"v_add_u32 v{VWV}, s33, v{VWV}")
    batches=[]
    for mi,inp in ((0,I_WQ),(1,I_WK),(2,I_WV)):
        for t in range(8): batches.append((mi,inp,t))
    TB=[16,32,48,64]
    def issue(bi):
        mi,inp,t=batches[bi]
        if t==0: srd(12 if mi%2==0 else 16,inp)
        s=12 if mi%2==0 else 16
        for q in range(8):
            for e0 in range(2):
                row=64*t+32*(q//4)+8*(q%2)+2*((q%4)//2)+e0
                smov(34,row*8192); E(f"buffer_load_dword v{TB[bi%4]+2*q+e0}, v122, {S(s)}, s34 offen")
    def consume(bi):
        mi,inp,t=batches[bi]; b=TB[bi%4]
        for beta in range(2):
            for q in range(8): E(f"v_perm_b32 v{80+beta*8+q}, v{b+2*q+1}, v{b+2*q}, s{21+beta}")
        if mi<2:
            for beta in range(2):
                for q in range(8): E(f"v_accvgpr_write_b32 a{mi*128+(t*2+beta)*8+q}, v{80+beta*8+q}")
        else:
            for beta in range(2):
                for hf in range(2): E(f"ds_write_b128 v{VWV}, v[{80+beta*8+hf*4}:{80+beta*8+hf*4+3}] offset:{(t*2+beta)*2048+hf*1024}")
            E("s_nop 1")
    n=len(batches)
    for bi in range(3): issue(bi)
    for bi in range(n):
        if bi+3<n: issue(bi+3)
        E(f"s_waitcnt vmcnt({16*min(3,n-1-bi)})"); consume(bi)
    srd(12,I_WO)
    E("v_lshlrev_b32 v122, 13, v120"); E("v_lshl_add_u32 v122, v121, 12, v122"); E("v_lshl_add_u32 v122, v2, 2, v122")
    E("s_lshl_b32 s32, s5, 17"); E(f"s_lshl_b32 s33, s{SWAVE}, 8"); E("s_add_u32 s32, s32, s33"); E("v_add_u32 v122, s32, v122")
    fr=[(p,t) for p in range(4) for t in range(4)]
    TB2=[16,24,32,40,48,56,64,72]
    def issue2(bi):
        p,t=fr[bi]
        for m in range(4):
            for e0 in range(2):
                smov(34,(32*t+16*(m//2)+2*(m%2)+e0)*1024+p*64); E(f"buffer_load_dword v{TB2[bi%8]+2*m+e0}, v122, {S(12)}, s34 offen")
    for bi in range(7): issue2(bi)
    for bi in range(16):
        if bi+7<16: issue2(bi+7)
        E(f"s_waitcnt vmcnt({8*min(7,15-bi)})"); p,t=fr[bi]; b=TB2[bi%8]
        for m in range(4):
            for beta in range(2): E(f"v_perm_b32 v{WO+(p*4+t)*8+2*m+beta}, v{b+2*m+1}, v{b+2*m}, s{21+beta}")
    C("address constants")
    E(f"s_lshl_b32 s33, s{SWAVE}, 7"); E("v_add_u32 v120, s33, v1"); E("v_lshrrev_b32 v121, 2, v120")
    E("v_and_b32 v122, 3, v120"); E("v_lshlrev_b32 v122, 5, v122")
    E("v_lshrrev_b32 v123, 4, v121"); E("v_lshl_add_u32 v122, v123, 10, v122")
    E("v_bfe_u32 v123, v121, 2, 2"); E("v_lshl_add_u32 v122, v123, 8, v122")
    E("v_bfe_u32 v123, v121, 1, 1"); E("v_lshl_add_u32 v122, v123, 7, v122")
    E("v_and_b32 v123, 1, v121"); E("v_lshl_add_u32 v122, v123, 3, v122"); E(f"v_add_u32 v{VMW}, {L_MEM}, v122")
    E(f"s_lshl_b32 s33, s{SWAVE}, 11"); E(f"v_lshlrev_b32 v{VPOLL}, 4, v1"); E(f"v_add_u32 v{VPOLL}, s33, v{VPOLL}")
    E(f"v_lshlrev_b32 v{VFR}, 4, v1"); E(f"v_add_u32 v0, {L_KX}, v{VFR}")
    E("v_and_b32 v120, 1, v3"); E("v_mul_u32_u24 v120, 1088, v120"); E("v_lshl_add_u32 v120, v2, 2, v120"); E("v_lshrrev_b32 v121, 1, v3"); E("v_lshl_add_u32 v120, v121, 1, v120")
    E(f"s_lshl_b32 s33, s{SWAVE}, 6"); E(f"s_add_u32 s33, s33, {L_QB}"); E(f"v_add_u32 v{VQW}, s33, v120")
    E("v_and_b32 v120, 7, v2"); E("v_mul_u32_u24 v120, 272, v120"); E("v_lshl_add_u32 v120, v3, 4, v120"); E(f"v_add_u32 v{VQR}, {L_QB}, v120")
    E(f"s_lshl_b32 s33, s{SWAVE}, 6"); E(f"s_add_u32 s33, s33, {L_OB}"); E(f"v_add_u32 v{VOW}, s33, v120")
    E("v_lshrrev_b32 v120, 1, v2"); E("v_lshlrev_b32 v120, 12, v120"); E("v_and_b32 v121, 1, v2"); E("v_lshl_add_u32 v120, v121, 6, v120")
    E("v_lshrrev_b32 v121, 1, v3"); E("v_lshl_add_u32 v120, v121, 5, v120"); E("v_and_b32 v121, 1, v3"); E("v_lshl_add_u32 v120, v121, 4, v120")
    E(f"s_lshl_b32 s33, s{SWAVE}, 17"); E("s_lshl_b32 s34, s5, 7"); E("s_add_u32 s33, s33, s34"); E(f"v_add_u32 v{VPS}, s33, v120")
    E(f"s_lshl_b32 s33, s5, 2"); E(f"s_add_u32 s33, s33, s{SWAVE}"); E("s_lshl_b32 s34, s33, 12"); E(f"v_add_u32 v{VRD}, s34, v{VFR}")
    E("v_and_b32 v120, 1, v1"); E("v_lshlrev_b32 v120, 5, v120"); E("v_bfe_u32 v121, v1, 4, 1"); E("v_lshl_add_u32 v120, v121, 4, v120")
    E("v_bfe_u32 v121, v1, 5, 1"); E("v_lshl_add_u32 v120, v121, 3, v120"); E("v_bfe_u32 v121, v1, 2, 1"); E("v_lshl_add_u32 v120, v121, 2, v120")
    E("s_lshl_b32 s34, s33, 6"); E(f"v_add_u32 v{VMS}, s34, v120")
    E("s_mov_b32 s44, 0x00330033"); E("s_mov_b32 s45, 0x00330033")
    E(f"v_mov_b32 v{VVT}, v{VPOLL}")
    smov(46,CEXP)
def prefetch_k(sreg_seg):
    E(f"s_lshl_b32 s34, s{sreg_seg}, 5"); E("s_add_u32 s34, s34, s5"); E("s_lshl_b32 s34, s34, 13")
    E(f"s_add_u32 s35, s34, {hex(WS_K)}"); E(f"s_add_u32 s57, s34, {hex(WS_VT)}")
    E(f"s_lshl_b32 s37, s{SWAVE}, 11"); E(f"s_add_u32 s37, s37, {L_KX}"); E("s_mov_b32 m0, s37"); E("s_nop 0")
    E(f"buffer_load_dwordx4 v{VPOLL}, {S(SW)}, s35 offen sc1 lds")
    E(f"buffer_load_dwordx4 v{VPOLL}, {S(SW)}, s35 offen offset:1024 sc1 lds")
def prefetch_v():
    E(f"buffer_load_dwordx4 v[{VT}:{VT+3}], v{VVT}, {S(SW)}, s57 offen sc1"); E(f"buffer_load_dwordx4 v[{VT+4}:{VT+7}], v{VVT}, {S(SW)}, s57 offen offset:1024 sc1")
def ringload(f):
    b=RING+(f%NR)*8
    return [f"ds_read_b128 v[{b}:{b+3}], v{VWV} offset:{f*2048}", f"ds_read_b128 v[{b+4}:{b+7}], v{VWV} offset:{f*2048+1024}"]
def spin_guard(lbl_fail):
    E("s_add_u32 s61, s61, 1"); E("s_cmp_gt_u32 s61, 0x40000"); E(f"s_cbranch_scc1 {lbl_fail}")
import os
PROF=os.environ.get("PROF")=="1"
WS_PROF=0xA0000
def TS(i):
    if PROF: E(f"s_memtime s[{64+2*i}:{65+2*i}]")
def TSflush():
    if not PROF: return
    E("s_waitcnt lgkmcnt(0)")
    for i in range(8): E(f"v_mov_b32 v{104+i}, s{64+2*i}")
    E(f"s_lshl_b32 s34, s5, 2"); E(f"s_add_u32 s34, s34, s{SWAVE}"); E("s_lshl_b32 s34, s34, 6"); E("s_add_u32 s34, s34, s50"); E("s_lshl_b32 s34, s34, 5"); E(f"s_add_u32 s34, s34, {hex(WS_PROF)}")
    E("v_mov_b32 v112, 0"); E("s_mov_b64 exec, 1")
    E(f"buffer_store_dwordx4 v[104:107], v112, {S(SW)}, s34 offen"); E(f"buffer_store_dwordx4 v[108:111], v112, {S(SW)}, s34 offen offset:16"); E("s_mov_b64 exec, -1")
SLP=int(os.environ.get("SLP","3"))
def chain_loop(fast):
    st="" if fast else " sc1"
    top=uid("ctop"); fin=uid("cfin"); done=uid("cdone")
    E("s_mov_b32 s50, 0")
    E(f"s_mov_b32 s35, {C_QKV*64}"); wait_cnt(35,16); prefetch_k(50); prefetch_v(); RT(2)
    L(top)
    E("s_waitcnt vmcnt(5)")
    TS(0)
    E("s_add_u32 s54, s50, 1"); E("s_lshr_b32 s58, s54, 2"); E(f"s_add_u32 s58, s58, {C_QKV}"); E("s_lshl_b32 s58, s58, 6")
    E(f"buffer_load_dword v123, off, {S(SW)}, s58 sc1")
    for f in range(NR):
        for x in ringload(f): E(x)
    for r in range(24): E(f"v_mov_b32 v{QX+r}, 0")
    E("s_lshl_b32 s51, s50, 13"); E(f"s_add_u32 s51, s51, {hex(WS_MEM)}")
    pl=uid("pm"); pd=uid("pmd")
    def mp(): E(f"buffer_load_dwordx4 v[16:19], v{VPOLL}, {S(SW)}, s51 offen sc1"); E(f"buffer_load_dwordx4 v[20:23], v{VPOLL}, {S(SW)}, s51 offen offset:1024 sc1")
    mp(); E(f"s_sleep {SLP}")
    L(pl)
    mp()
    spin_guard(pd)
    E("s_waitcnt vmcnt(2)")
    E("v_max3_u32 v24, v16, v17, v18"); E("v_max3_u32 v25, v19, v20, v21"); E("v_max3_u32 v24, v22, v23, v24"); E("v_max_u32 v24, v24, v25")
    E("v_cmp_eq_u32 vcc, -1, v24"); E(f"s_cbranch_vccnz {pl}")
    L(pd)
    TS(1)
    E(f"ds_write_b64 v{VMW}, v[16:17]"); E(f"ds_write_b64 v{VMW}, v[18:19] offset:16"); E(f"ds_write_b64 v{VMW}, v[20:21] offset:1024"); E(f"ds_write_b64 v{VMW}, v[22:23] offset:1040")
    E("s_waitcnt lgkmcnt(0)"); E("s_barrier"); E("s_waitcnt vmcnt(0)")
    for t in range(8): E(f"ds_read_b128 v[{AF+4*t}:{AF+4*t+3}], v0 offset:{L_MEM-L_KX+t*1024}")
    l=uid("sk"); E("s_cmp_eq_u32 s50, 0"); E(f"s_cbranch_scc1 {l}"); E(f"s_cmp_lg_u32 s{SWAVE}, 0"); E(f"s_cbranch_scc1 {l}")
    E(f"s_add_u32 s34, s50, {C_KV-1}"); E("s_lshl_b32 s34, s34, 6"); E("v_mov_b32 v120, 0"); E("v_mov_b32 v121, 1"); E("s_mov_b64 exec, 1")
    E(f"buffer_atomic_add v121, v120, {S(SW)}, s34 offen sc1"); E("s_mov_b64 exec, -1"); L(l)
    lds_out=8
    issued=[("AF",t) for t in range(8)]
    def waitfor(key):
        if key not in issued: return
        idx=len(issued)-1-issued[::-1].index(key); n=len(issued)-1-idx
        E(f"s_waitcnt lgkmcnt({min(n,15)})"); del issued[:idx+1]
    nxt=NR
    for t in range(8):
        waitfor(("AF",t))
        for (acc,mi) in ((QX,0),(KX_,1)):
            for b in range(2):
                E(f"v_smfmac_f32_16x16x64_bf16 v[{acc+4*b}:{acc+4*b+3}], v[{AF+4*t}:{AF+4*t+3}], a[{mi*128+(t*2+b)*8}:{mi*128+(t*2+b)*8+7}], v{IDX}")
        for b in range(2):
            f=t*2+b; waitfor(("R",f)); rb=RING+(f%NR)*8
            E(f"v_smfmac_f32_16x16x64_bf16 v[{VX+4*b}:{VX+4*b+3}], v[{AF+4*t}:{AF+4*t+3}], v[{rb}:{rb+7}], v{IDX}")
            if nxt<16:
                for x in ringload(nxt): E(x)
                issued.append(("Rh",nxt)); issued.append(("R",nxt)); nxt+=1
    TS(2)
    for i in range(8): E(f"ds_read_b128 v[{AF+4*i}:{AF+4*i+3}], v0 offset:{i*1024}")
    E("s_nop 7")
    for (x,y) in ((QX,QY),(KX_,KY),(VX,VY)):
        for r in range(4): E(f"v_permlane32_swap_b32 v{x+r}, v{y+r}")
        E("s_nop 0")
        for r in range(4): E(f"v_add_f32 v{x+r}, v{x+r}, v{y+r}")
        E(f"v_cvt_pk_bf16_f32 v{y}, v{x}, v{x+1}"); E(f"v_cvt_pk_bf16_f32 v{y+1}, v{x+2}, v{x+3}")
        if x!=VX:
            off=0 if x==QX else L_KB-L_QB
            for r in range(4): E(f"ds_write_b16{'_d16_hi' if r%2 else ''} v{VQW}, v{y+r//2} offset:{off+r*272}")
    E("s_lshl_b32 s52, s50, 5"); E("s_add_u32 s52, s52, s5"); E("s_lshl_b32 s52, s52, 11")
    E(f"s_lshl_b32 s53, s{SWAVE}, 9"); E("s_add_u32 s53, s53, s52"); E(f"s_add_u32 s53, s53, {hex(WS_VM)}"); E(f"v_lshrrev_b32 v120, 1, v{VFR}")
    E(f"buffer_store_dwordx2 v[{VY}:{VY+1}], v120, {S(SW)}, s53 offen sc1")
    E("s_waitcnt lgkmcnt(0)"); E("s_barrier")
    TS(3)
    l=uid("pk"); l2=uid("pk2"); E("s_cmp_eq_u32 s50, 63"); E(f"s_cbranch_scc1 {l}")
    E("v_readfirstlane_b32 s60, v123"); E("s_nop 3"); E("s_cmp_ge_u32 s60, 16"); E(f"s_cbranch_scc1 {l2}"); wait_cnt(58,16); L(l2)
    prefetch_k(54); L(l)
    for t in range(4): E(f"ds_read_b128 v[{QX+4*t}:{QX+4*t+3}], v{VQR} offset:{t*64}")
    for t in range(4): E(f"ds_read_b128 v[{RING+4*t}:{RING+4*t+3}], v{VQR} offset:{L_KB-L_QB+t*64}")
    E("v_and_b32 v120, 7, v2"); E("v_lshlrev_b32 v120, 8, v120"); E("v_lshl_add_u32 v120, v3, 4, v120"); E(f"s_lshl_b32 s34, s{SWAVE}, 6"); E("v_add_u32 v120, s34, v120")
    E(f"s_add_u32 s53, s52, {hex(WS_KM)}")
    E(f"v_add_u32 v121, {L_KB-L_OB}, v{VOW}"); E("ds_read_b128 v[112:115], v121")
    for t in range(4):
        E(f"s_waitcnt lgkmcnt({8-t})")
        for kt in range(2):
            E(f"v_mfma_f32_16x16x32_bf16 v[{SD+4+4*kt}:{SD+7+4*kt}], v[{AF+(kt*4+t)*4}:{AF+(kt*4+t)*4+3}], v[{QX+4*t}:{QX+4*t+3}], {'0' if t==0 else V(SD+4+4*kt,4)}")
    E("s_waitcnt lgkmcnt(0)")
    E(f"buffer_store_dwordx4 v[112:115], v120, {S(SW)}, s53 offen sc1")
    E("s_cmp_eq_u32 s50, 63"); E(f"s_cbranch_scc1 {fin}")
    for t in range(4): E(f"v_mfma_f32_16x16x32_bf16 v[{SD}:{SD+3}], v[{RING+4*t}:{RING+4*t+3}], v[{QX+4*t}:{QX+4*t+3}], {'0' if t==0 else V(SD,4)}")
    E("s_nop 7")
    M=116
    E(f"v_max3_f32 v{M}, v{SD+4}, v{SD+5}, v{SD+6}"); E(f"v_max3_f32 v{M+1}, v{SD+7}, v{SD+8}, v{SD+9}"); E(f"v_max3_f32 v{M}, v{SD+10}, v{SD+11}, v{M}")
    E(f"v_max3_f32 v{M+1}, v{SD}, v{SD+1}, v{M+1}"); E(f"v_max3_f32 v{M}, v{SD+2}, v{SD+3}, v{M}"); E(f"v_max_f32 v{M}, v{M}, v{M+1}")
    greduce(M,M+1,"v_max_f32")
    E(f"v_mul_f32 v{M}, s46, v{M}")
    for i in list(range(4,12))+list(range(4)): E(f"v_fma_f32 v{SD+i}, v{SD+i}, s46, -v{M}")
    for i in list(range(4,12))+list(range(4)): E(f"v_exp_f32 v{SD+i}, v{SD+i}")
    P=QX
    E("s_nop 0")
    for q in range(4): E(f"v_cvt_pk_bf16_f32 v{P+q}, v{SD+4+2*q}, v{SD+5+2*q}")
    E(f"v_cvt_pk_bf16_f32 v{P+4}, v{SD}, v{SD+1}"); E(f"v_cvt_pk_bf16_f32 v{P+5}, v{SD+2}, v{SD+3}")
    O=KX_+4
    OX=60; OY=112
    E(f"v_mfma_f32_16x16x32_bf16 v[{OX}:{OX+3}], v[{VT}:{VT+3}], v[{P}:{P+3}], 0")
    E(f"v_mfma_f32_16x16x32_bf16 v[{OY}:{OY+3}], v[{VT+4}:{VT+7}], v[{P}:{P+3}], 0")
    for q in range(2):
        E(f"v_cndmask_b32 v{P+6+q}, 0, v{P+4+q}, s[40:41]"); E(f"v_cndmask_b32 v{P+8+q}, 0, v{P+4+q}, s[42:43]")
    E("s_nop 1")
    E(f"v_mfma_f32_16x16x16_bf16 v[{OX}:{OX+3}], v[{VY}:{VY+1}], v[{P+6}:{P+7}], v[{OX}:{OX+3}]")
    E(f"v_mfma_f32_16x16x16_bf16 v[{OY}:{OY+3}], v[{VY}:{VY+1}], v[{P+8}:{P+9}], v[{OY}:{OY+3}]")
    E(f"v_add_f32 v{M}, v{SD}, v{SD+1}"); E(f"v_add_f32 v{M+1}, v{SD+2}, v{SD+3}"); E(f"v_add_f32 v{M}, v{M}, v{M+1}"); E(f"v_cndmask_b32 v{M}, 0, v{M}, s[40:41]")
    E(f"v_add_f32 v{M+1}, v{SD+4}, v{SD+5}"); E(f"v_add_f32 v{M+2}, v{SD+6}, v{SD+7}"); E(f"v_add_f32 v{M+3}, v{SD+8}, v{SD+9}"); E(f"v_add_f32 v{M}, v{M}, v{SD+10}")
    E(f"v_add_f32 v{M+1}, v{M+1}, v{SD+11}"); E(f"v_add_f32 v{M+2}, v{M+2}, v{M+3}"); E(f"v_add_f32 v{M}, v{M}, v{M+1}"); E(f"v_add_f32 v{M}, v{M}, v{M+2}")
    greduce(M,M+1,"v_add_f32")
    E(f"v_rcp_f32 v{M}, v{M}"); E("s_nop 4")
    for r in range(4): E(f"v_mul_f32 v{OX+r}, v{OX+r}, v{M}"); E(f"v_mul_f32 v{OY+r}, v{OY+r}, v{M}")
    for r in range(4): E(f"v_cvt_pk_bf16_f32 v{SD+r}, v{OX+r}, v{OY+r}")
    E(f"ds_write_b128 v{VOW}, v[{SD}:{SD+3}]")
    prefetch_v()
    for r in range(16): E(f"v_mov_b32 v{AF+r}, 0")
    E("s_waitcnt lgkmcnt(0)"); E("s_barrier")
    TS(4)
    E(f"v_add_u32 v120, {L_OB-L_QB}, v{VQR}")
    for t in range(4): E(f"ds_read_b128 v[{QX+4*t}:{QX+4*t+3}], v120 offset:{t*64}")
    for t in range(4):
        E(f"s_waitcnt lgkmcnt({3-t})")
        for p in range(4): E(f"v_smfmac_f32_16x16x64_bf16 v[{AF+4*p}:{AF+4*p+3}], v[{QX+4*t}:{QX+4*t+3}], v[{WO+(p*4+t)*8}:{WO+(p*4+t)*8+7}], v{IDX}")
    E("s_and_b32 s34, s50, 1"); E("s_lshl_b32 s34, s34, 19"); E(f"s_add_u32 s55, s34, {hex(WS_PART)}")
    E("s_mov_b32 s56, s55"); E("s_nop 4")
    for p in range(4):
        E(f"buffer_store_dwordx4 v[{AF+4*p}:{AF+4*p+3}], v{VPS}, {S(SW)}, s56 offen{st}"); E("s_add_u32 s56, s56, 0x8000")
    TS(5)
    TS(6)
    pl=uid("pr"); pd=uid("prd"); R=96
    def pp():
        for u in range(4): E(f"buffer_load_dwordx4 v[{R+4*u}:{R+4*u+3}], v{VRD}, {S(SW)}, s55 offen offset:{u*1024} sc1")
    pp(); E(f"s_sleep {SLP}")
    L(pl)
    pp()
    spin_guard(pd)
    E("s_waitcnt vmcnt(4)")
    E(f"v_max3_u32 v112, v{R}, v{R+4}, v{R+8}"); E(f"v_max_u32 v112, v112, v{R+12}"); E("v_cmp_eq_u32 vcc, -1, v112"); E(f"s_cbranch_vccnz {pl}")
    L(pd)
    TS(7)
    for r in range(4): E(f"v_add_f32 v{112+r}, v{R+r}, v{R+4+r}"); E(f"v_add_f32 v{116+r}, v{R+8+r}, v{R+12+r}")
    R=112
    for r in range(4): E(f"v_add_f32 v{R+r}, v{R+r}, v{R+4+r}")
    E("s_nop 1")
    for r in range(4): E(f"v_add_f32_dpp v{R+r}, v{R+r}, v{R+r} row_ror:8 row_mask:0xf bank_mask:0xf")
    E("s_nop 1"); E(f"v_permlane32_swap_b32 v{R}, v{R+1}"); E(f"v_permlane32_swap_b32 v{R+2}, v{R+3}"); E("s_nop 1")
    E(f"v_add_f32 v{R}, v{R}, v{R+1}"); E(f"v_add_f32 v{R+2}, v{R+2}, v{R+3}"); E("s_nop 1")
    E(f"v_permlane16_swap_b32 v{R}, v{R+2}"); E("s_nop 1"); E(f"v_add_f32 v{R}, v{R}, v{R+2}"); E("s_nop 1")
    E(f"v_mov_b32_dpp v{R+1}, v{R} quad_perm:[2,3,0,1] row_mask:0xf bank_mask:0xf"); E("s_nop 0")
    E(f"v_cvt_pk_bf16_f32 v{R}, v{R}, v{R+1}")
    E("s_add_u32 s34, s51, 0x2000"); E("s_mov_b64 exec, s[44:45]")
    E(f"buffer_store_dword v{R}, v{VMS}, {S(SW)}, s34 offen{st}"); E("s_mov_b64 exec, -1")
    for r in range(4): E(f"v_mov_b32 v{R+4+r}, -1")
    for u in range(4): E(f"buffer_store_dwordx4 v[{R+4}:{R+7}], v{VRD}, {S(SW)}, s55 offen offset:{u*1024}{st}")
    TSflush()
    E("s_add_u32 s50, s50, 1"); E(f"s_branch {top}")
    L(fin)
    E(f"s_mov_b32 s34, {(C_KV+63)*64}"); signal_cnt(34)
```

```python
from common import *
import common, os
def k0():
    name="init_kernel"; khead(name)
    E("s_cmp_ge_u32 s2, 256"); E("s_cbranch_scc1 L_k0_end")
    load_ptrs(); srd(SW,I_WS)
    E("v_lshlrev_b32 v1, 4, v0")
    E("s_lshl_b32 s3, s2, 12"); E("v_add_u32 v1, s3, v1")
    for i in range(4): E(f"v_mov_b32 v{4+i}, -1"); E(f"v_mov_b32 v{8+i}, 0")
    smov(20,WS_PART); E(f"buffer_store_dwordx4 v[4:7], v1, {S(SW)}, s20 offen")
    E("s_cmp_ge_u32 s2, 144"); E("s_cbranch_scc1 L_k0_a")
    smov(20,WS_MEM); E(f"buffer_store_dwordx4 v[4:7], v1, {S(SW)}, s20 offen")
    L("L_k0_a")
    E("s_cmp_ge_u32 s2, 8"); E("s_cbranch_scc1 L_k0_b")
    E(f"buffer_store_dwordx4 v[8:11], v1, {S(SW)}, 0 offen")
    L("L_k0_b")
    E("s_cmp_ge_u32 s2, 2"); E("s_cbranch_scc1 L_k0_c")
    srd(12,I_MEM0)
    E("s_lshl_b32 s3, s2, 8"); E("v_add_u32 v12, s3, v0")
    E("v_lshrrev_b32 v13, 2, v12"); E("v_lshlrev_b32 v13, 3, v13")
    E("v_and_b32 v14, 3, v12"); E("v_lshlrev_b32 v14, 11, v14"); E("v_add_u32 v13, v13, v14")
    E(f"buffer_load_dwordx2 v[4:5], v13, {S(12)}, 0 offen"); E(f"buffer_load_dwordx2 v[6:7], v13, {S(12)}, 0 offen offset:1024")
    E("s_waitcnt vmcnt(0)")
    smov(20,WS_MEM); E(f"buffer_store_dwordx4 v[4:7], v1, {S(SW)}, s20 offen")
    L("L_k0_c")
    E("s_cmp_ge_u32 s2, 96"); E("s_cbranch_scc1 L_k0_end")
    srd(12,I_WMOD); srd(16,I_C)
    E("v_lshrrev_b32 v20, 4, v0")
    E("v_and_b32 v21, 15, v0")
    E("v_mul_u32_u24 v22, 196608, v20" )
    E("v_lshl_add_u32 v22, v21, 2, v22"); E("s_lshl_b32 s3, s2, 6"); E("v_add_u32 v22, s3, v22")
    E("v_lshlrev_b32 v23, 6, v20")
    for i in range(4): E(f"buffer_load_dwordx4 v[{24+4*i}:{27+4*i}], v23, {S(16)}, 0 offen offset:{16*i}")
    for i in range(32):
        smov(20,i*6144); E(f"buffer_load_dword v{64+i}, v22, {S(12)}, s20 offen")
    E("v_mov_b32 v40, 0"); E("v_mov_b32 v41, 0"); smov(21,0xbfb8aa3b)
    E("s_waitcnt vmcnt(32)")
    for i in range(32):
        src=24+i//2; d=100+i
        E(f"v_lshlrev_b32 v{d}, 16, v{src}" if i%2==0 else f"v_and_b32 v{d}, 0xffff0000, v{src}")
        E(f"v_mul_f32 v42, s21, v{d}"); E("v_exp_f32 v42, v42"); E("s_nop 0"); E("v_add_f32 v42, 1.0, v42"); E("v_rcp_f32 v42, v42"); E("s_nop 0")
        E(f"v_mul_f32 v{d}, v{d}, v42"); cvt_bf16_round_f32(d,None)
    E("s_waitcnt vmcnt(0)")
    for i in range(32):
        E(f"v_lshlrev_b32 v42, 16, v{64+i}"); E(f"v_and_b32 v43, 0xffff0000, v{64+i}")
        E(f"v_fmac_f32 v40, v{100+i}, v42"); E(f"v_fmac_f32 v41, v{100+i}, v43")
    E("v_lshlrev_b32 v44, 3, v0"); E("ds_write_b64 v44, v[40:41]"); E("s_waitcnt lgkmcnt(0)"); E("s_barrier")
    E("v_cmp_gt_u32 vcc, 16, v0"); E("s_and_saveexec_b64 s[22:23], vcc"); E("s_cbranch_execz L_k0_end")
    for i in range(16): E(f"ds_read_b64 v[{64+2*i}:{65+2*i}], v44 offset:{i*128}")
    E("s_waitcnt lgkmcnt(0)")
    for i in range(1,16): E(f"v_add_f32 v64, v64, v{64+2*i}"); E(f"v_add_f32 v65, v65, v{65+2*i}")
    cvt_bf16_round_f32(64,None); cvt_bf16_round_f32(65,None)
    E("s_lshl_b32 s3, s2, 7"); E("v_add_u32 v44, s3, v44"); smov(20,WS_MOD)
    E(f"buffer_store_dwordx2 v[64:65], v44, {S(SW)}, s20 offen")
    L("L_k0_end"); E("s_endpgm"); out.append(kd(name,136,136))

def unpack8(src,dst):
    for i in range(4):
        E(f"v_lshlrev_b32 v{dst+2*i}, 16, v{src+i}"); E(f"v_and_b32 v{dst+2*i+1}, 0xffff0000, v{src+i}")
def ln_row(x,sc,sh,t,dst):
    E(f"v_add_f32 v{t}, v{x}, v{x+1}")
    for i in range(2,8): E(f"v_add_f32 v{t}, v{t}, v{x+i}")
    xreduce(t,t+1,"v_add_f32"); E(f"v_mul_f32 v{t}, 0x3b000000, v{t}")
    for i in range(8): E(f"v_sub_f32 v{x+i}, v{x+i}, v{t}")
    E(f"v_mul_f32 v{t}, v{x}, v{x}")
    for i in range(1,8): E(f"v_fmac_f32 v{t}, v{x+i}, v{x+i}")
    xreduce(t,t+1,"v_add_f32"); E(f"v_mov_b32 v{t+1}, 0x3727c5ac"); E(f"v_fmac_f32 v{t+1}, 0x3b000000, v{t}")
    E(f"v_rsq_f32 v{t}, v{t+1}"); E("s_nop 0")
    for i in range(8): E(f"v_mul_f32 v{x+i}, v{x+i}, v{t}"); E(f"v_fma_f32 v{x+i}, v{x+i}, v{sc+i}, v{sh+i}")
    for i in range(4): E(f"v_cvt_pk_bf16_f32 v{dst+i}, v{x+2*i}, v{x+2*i+1}")
def load_mod8(dst,chunk,voff):
    smov(20,WS_MOD+chunk*2048)
    E(f"buffer_load_dwordx4 v[{dst}:{dst+3}], v{voff}, {S(SW)}, s20 offen"); E(f"buffer_load_dwordx4 v[{dst+4}:{dst+7}], v{voff}, {S(SW)}, s20 offen offset:16")
def one_plus(sc):
    for i in range(8): E(f"v_add_f32 v{sc+i}, 1.0, v{sc+i}"); cvt_bf16_round_f32(sc+i,None)
def ln1_task():
    srd(16,I_X)
    E("v_lshlrev_b32 v4, 5, v1"); load_mod8(16,0,4); load_mod8(24,1,4)
    E("s_lshl_b32 s32, s5, 4"); E(f"s_lshl_b32 s33, s{SWAVE}, 2"); E("s_add_u32 s32, s32, s33"); E("s_lshl_b32 s32, s32, 10")
    E("v_lshlrev_b32 v5, 4, v1")
    for i in range(4): E(f"buffer_load_dwordx4 v[{32+4*i}:{35+4*i}], v5, {S(16)}, s32 offen offset:{1024*i}")
    E("s_waitcnt vmcnt(4)"); one_plus(24)
    E(f"s_lshl_b32 s33, s5, 14"); E(f"s_lshl_b32 s34, s{SWAVE}, 6"); E("s_add_u32 s33, s33, s34"); E(f"s_add_u32 s33, s33, {hex(WS_H1)}")
    E("v_lshrrev_b32 v6, 2, v1"); E("v_lshlrev_b32 v6, 10, v6"); E("v_and_b32 v7, 3, v1"); E("v_lshl_add_u32 v6, v7, 8, v6")
    for i in range(4):
        E(f"s_waitcnt vmcnt({3-i})" if i==0 else "s_nop 0")
        if i==0: E("s_waitcnt vmcnt(0)")
        unpack8(32+4*i,48); ln_row(48,24,16,56,60)
        E(f"buffer_store_dwordx4 v[60:63], v6, {S(SW)}, s33 offen offset:{16*i}"); E("s_nop 1")

RB=16; FR=112; AB=176
def gemm(MT,nk,aload,bsrd,vB,bstride,alds=None):
    pre = aload is None
    Ln = 8+(0 if pre else MT)
    def areg(t,mt): return AB+((t%2)*MT+mt)*4 if alds else AB+((t*MT+mt)*4 if pre else ((t%4)*MT+mt)*4)
    def ldsA(t): return [f"ds_read_b128 v[{areg(t,mt)}:{areg(t,mt)+3}], v{alds[mt//4]} offset:{(mt%4)*16384+t*1024}" for mt in range(MT)]
    def loads(t):
        o=[]
        for i in range(8): o.append(f"buffer_load_dwordx4 v[{RB+(t%3)*32+4*i}:{RB+(t%3)*32+4*i+3}], v{vB}, {S(bsrd)}, s{24+i} offen")
        if not pre:
            for mt in range(MT): o.append(aload(t,areg(t,mt),mt))
        o.append(f"v_add_u32 v{vB}, s23, v{vB}")
        return o
    def perms(t):
        o=[]; rb=RB+(t%3)*32; fr=FR+(t%2)*32
        for j in range(8):
            for ii in range(4):
                o.append(f"v_perm_b32 v{fr+4*j+ii}, v{rb+(2*ii+1)*4+j//2}, v{rb+(2*ii)*4+j//2}, s{21 if j%2==0 else 22}")
        return o
    smov(21,0x05040100); smov(22,0x07060302); smov(23,32*bstride)
    for i in range(8): smov(24+i,i*bstride)
    for t in range(min(3,nk)):
        for x in loads(t): E(x)
    E(f"s_waitcnt vmcnt({Ln*(min(3,nk)-1)})")
    for x in perms(0): E(x)
    if alds:
        for x in ldsA(0): E(x)
    for t in range(nk):
        outst = Ln if t+2<nk else 0
        E(f"s_waitcnt vmcnt({outst})"+(" lgkmcnt(0)" if alds else ""))
        fill=[]
        if alds and t+1<nk: fill+=ldsA(t+1)
        if t+1<nk: fill+=perms(t+1)
        ld = loads(t+3) if t+3<nk else []
        mf=[]
        for j in range(8):
            for mt in range(MT):
                d=(mt*8+j)*4; c = "0" if t==0 else A(d,4)
                mf.append(f"v_mfma_f32_16x16x32_bf16 {A(d,4)}, v[{areg(t,mt)}:{areg(t,mt)+3}], v[{FR+(t%2)*32+4*j}:{FR+(t%2)*32+4*j+3}], {c}")
        fill = ld+fill
        n=len(mf); k=0
        E("s_nop 1")
        for i,m in enumerate(mf):
            E(m)
            tgt=(len(fill)*(i+1)+n-1)//n
            while k<tgt and k<len(fill): E(fill[k]); k+=1
    E("s_nop 7"); E("s_nop 7")
def rdacc(v,a): E(f"v_accvgpr_read_b32 v{v}, a{a}")

def qkv_task(load_a):
    if load_a is not None:
        l=uid("na"); E(f"s_cmp_eq_u32 s{load_a}, 0"); E(f"s_cbranch_scc1 {l}")
        E("v_lshlrev_b32 v5, 4, v1"); E("s_lshl_b32 s39, s33, 17"); E(f"s_lshl_b32 s38, s{SWAVE}, 15"); E("s_add_u32 s39, s39, s38"); E(f"s_add_u32 s39, s39, {hex(WS_H1)}")
        for i in range(8):
            E("s_mov_b32 m0, s38"); E("s_nop 0")
            for q in range(4): E(f"buffer_load_dwordx4 v5, {S(SW)}, s39 offen offset:{q*1024} lds")
            E("s_add_u32 s38, s38, 4096"); E("s_add_u32 s39, s39, 4096")
        L(l)
    E("s_mov_b32 s42, s34")
    E("s_lshl_b32 s34, s34, 2"); E(f"s_add_u32 s34, s34, s{SWAVE}")
    E("s_lshr_b32 s36, s34, 5"); E("s_and_b32 s37, s34, 31")
    srd(12,I_WQ)
    for m,i in ((1,I_WK),(2,I_WV)):
        l=uid("m"); E(f"s_cmp_lg_u32 s36, {m}"); E(f"s_cbranch_scc1 {l}"); srd(12,i); L(l)
    E("v_lshlrev_b32 v4, 16, v3"); E("v_lshl_add_u32 v4, v2, 4, v4"); E("s_lshl_b32 s38, s37, 8"); E("v_add_u32 v4, s38, v4")
    E("v_lshlrev_b32 v5, 4, v1"); E("v_add_u32 v6, 0x10000, v5")
    E("s_waitcnt vmcnt(0)"); E("s_barrier")
    PQ=os.environ.get("PROFQ")=="1"
    if PQ: RT(1)
    gemm(8,16,None,12,4,8192,alds=(5,6))
    if PQ: RT(2)
    E("s_lshl_b32 s40, s33, 7"); E("s_add_u32 s40, s40, s37"); E("s_lshl_b32 s40, s40, 13")
    lv=uid("v"); le=uid("e")
    E("s_cmp_eq_u32 s36, 2"); E(f"s_cbranch_scc1 {lv}")
    E("s_lshl_b32 s41, s36, 24"); E(f"s_add_u32 s41, s41, {hex(WS_Q)}"); E("s_add_u32 s40, s40, s41")
    E("v_lshrrev_b32 v8, 2, v2"); E("v_lshlrev_b32 v8, 10, v8"); E("v_and_b32 v9, 3, v2"); E("v_lshl_add_u32 v8, v9, 8, v8"); E("v_lshl_add_u32 v8, v3, 6, v8")
    def flush(sg):
        R=128+(sg%2)*32
        E("s_waitcnt lgkmcnt(0)")
        for i in range(8): E(f"ds_read_b128 v[{R+4*i}:{R+4*i+3}], v9 offset:{i*1024}")
        smov(41,sg*32*8192); E("s_add_u32 s41, s41, s40"); E("s_add_u32 s43, s41, 4096")
        for i in range(8):
            E(f"s_waitcnt lgkmcnt({7-i})")
            E(f"buffer_store_dwordx4 v[{R+4*i}:{R+4*i+3}], v5, {S(SW)}, s{41 if i<4 else 43} offen offset:{(i%4)*1024} sc1")
    def ldsb():
        E(f"s_lshl_b32 s43, s{SWAVE}, 13"); E("s_add_u32 s43, s43, 0x20000"); E("v_add_u32 v8, s43, v8"); E("v_add_u32 v9, s43, v5")
    ldsb()
    for mt in range(8):
        for r in range(4):
            b=16+((mt*4+r)%8)*12
            for j in range(8): rdacc(b+j,(mt*8+j)*4+r)
            for jj in range(4): E(f"v_cvt_pk_bf16_f32 v{b+8+jj}, v{b+2*jj}, v{b+2*jj+1}")
            E(f"ds_write_b128 v8, v[{b+8}:{b+11}] offset:{(mt%2)*4096+r*16}")
        if mt%2==1: flush(mt//2)
    E(f"s_branch {le}")
    L(lv)
    E(f"s_add_u32 s40, s40, {hex(WS_VT)}")
    E("v_lshrrev_b32 v8, 2, v2"); E("v_lshlrev_b32 v8, 11, v8"); E("v_and_b32 v9, 3, v2"); E("v_lshl_add_u32 v8, v9, 6, v8"); E("v_lshl_add_u32 v8, v3, 8, v8")
    ldsb()
    for sg in range(4):
        for j in range(8):
            b=16+(j%8)*12
            for hh in range(2):
                for r in range(4): rdacc(b+hh*4+r,((2*sg+hh)*8+j)*4+r)
            for q in range(4): E(f"v_cvt_pk_bf16_f32 v{b+8+q}, v{b+2*q}, v{b+2*q+1}")
            E(f"ds_write_b128 v8, v[{b+8}:{b+11}] offset:{(j%2)*1024+(j//2)*16}")
        flush(sg)
    L(le)
    E(f"s_add_u32 s35, s33, {C_QKV}"); E("s_cmp_lt_u32 s42, 8"); E(f"s_cselect_b32 s41, {C_Q-C_QKV}, 0"); E("s_add_u32 s35, s35, s41"); E("s_lshl_b32 s35, s35, 6"); signal_cnt(35)
    if PQ: common.RTflush(0xE1000,5,keep=True); E("s_endpgm")
def qkv_phase():
    def dm(): E(f"s_mul_hi_u32 s34, s5, {hex((2**32+13)//14)}"); E("s_mul_i32 s33, s34, 14"); E("s_sub_u32 s33, s5, s33")
    dm(); E("s_add_u32 s34, s34, 8"); E("s_mov_b32 s62, 1"); E("s_mov_b32 s63, 0")
    top=uid("q2"); done=uid("q2d")
    L(top)
    qkv_task(62)
    E("s_cmp_lg_u32 s63, 0"); E(f"s_cbranch_scc1 {done}"); E("s_mov_b32 s63, 1")
    dm(); E("s_mov_b32 s62, 0")
    E("s_cmp_lt_u32 s34, 8"); E(f"s_cbranch_scc1 {top}")
    E("s_sub_u32 s35, s5, 112")
    E("s_cmp_ge_u32 s35, 48"); E(f"s_cbranch_scc1 {done}")
    E("s_mov_b32 s62, 1"); E("s_and_b32 s33, s35, 1"); E("s_add_u32 s33, s33, 14"); E("s_lshr_b32 s34, s35, 1"); E(f"s_branch {top}")
    L(done)
```
